```python
import torch

def _softmax(x, axis=-1):
    return torch.softmax(x, dim=axis)
def _gelu(x):
    return torch.nn.functional.gelu(x, approximate="tanh")
def _silu(x):
    return torch.nn.functional.silu(x)
def _sigmoid(x):
    return torch.sigmoid(x)
def _layernorm(x, axis=-1, eps=1e-5):
    m = x.mean(dim=axis, keepdim=True)
    v = x.var(dim=axis, keepdim=True, unbiased=False)
    return (x - m) / torch.sqrt(v + eps)
def _scatter_add(tgt, idx, src, axis=0):
    return tgt.clone().index_add_(axis, idx, src)
def _segment_sum(src, seg, n):
    out = torch.zeros((n,) + src.shape[1:], dtype=src.dtype)
    return out.index_add_(0, seg, src)
def _pad(x, pw):
    flat = tuple(v for pair in reversed(pw) for v in pair)
    return torch.nn.functional.pad(x, flat)

kernel_name = 'standalone__mha_block_cached__near_ridge'

def setup_inputs():

    _w = (lambda a: (lambda t: t.to(torch.bfloat16) if t.is_floating_point() else t)(torch.as_tensor(a)))
    B, Sq, D = 8, 144, 448
    H, Sk, Dh = 16, 512, 256
    return {
        "x": _w((lambda *s: torch.randn(*s, dtype=torch.bfloat16) * 0.8)(B, Sq, D)),
        "k_cache": _w((lambda *s: torch.randn(*s, dtype=torch.bfloat16) * 0.8)(B, H, Sk, Dh)),
        "v_cache": _w((lambda *s: torch.randn(*s, dtype=torch.bfloat16) * 0.05)(B, H, Sk, Dh)),
        "wq": _w((lambda *s: torch.randn(*s, dtype=torch.bfloat16) * 0.8)(D, H * Dh) * (D ** -0.5)),
        "wo": _w((lambda *s: torch.randn(*s, dtype=torch.bfloat16) * 0.05)(H * Dh, D) * ((H * Dh) ** -0.5)),
    }

def reference(x, k_cache, v_cache, wq, wo):
    B, Sq, D = x.shape
    H, Dh = 16, 256
    q = (lambda x, *d: x.permute(*d))((x @ wq).reshape(B, Sq, H, Dh), 0, 2, 1, 3)
    scores = torch.einsum("bhqd,bhkd->bhqk", q, k_cache) * (Dh ** -0.5)
    p = _softmax(scores, axis=-1)
    o = torch.einsum("bhqk,bhkd->bhqd", p, v_cache)
    return (lambda x, *d: x.permute(*d))(o, 0, 2, 1, 3).reshape(B, Sq, H * Dh) @ wo
```

```python
import re

REG_RE = re.compile(r"^-?(?:abs\()?([vas])(?:(\d+)|\[(\d+):(\d+)\])\)?$")
TRANS = ("v_exp_f32", "v_log_f32", "v_rcp_f32", "v_rsq_f32", "v_sqrt_f32", "v_sin_f32", "v_cos_f32")


def reg(kind, lo, n=1):
    return f"{kind}{lo}" if n == 1 else f"{kind}[{lo}:{lo + n - 1}]"


def v(lo, n=1): return reg("v", lo, n)
def a(lo, n=1): return reg("a", lo, n)
def s(lo, n=1): return reg("s", lo, n)


def regs_of(op):
    op = op.strip()
    if op == "vcc":
        return [("s", "vcc")]
    if op == "m0":
        return [("s", "m0")]
    m = REG_RE.match(op)
    if not m:
        return []
    k = m.group(1)
    if m.group(2) is not None:
        return [(k, int(m.group(2)))]
    return [(k, i) for i in range(int(m.group(3)), int(m.group(4)) + 1)]


class Tok:
    __slots__ = ("q", "n")

    def __init__(self, q, n):
        self.q = q
        self.n = n


class Gen:
    def __init__(self):
        self.lines = []
        self.reset_state()
        self.ninstr = 0
        self.nnops = 0

    def reset_state(self):
        self.pos = 0
        self.issued = {"vm": 0, "lg": 0}
        self.done = {"vm": 0, "lg": 0}
        self.pending = {}
        self.lastw = {}
        self.cread = {}
        self.stread = {}

    def raw(self, text):
        self.lines.append(text)

    def comment(self, text):
        self.lines.append("; " + text)

    def label(self, name):
        self.lines.append(name + ":")

    def _out(self, text, states=1):
        self.lines.append("    " + text)
        self.pos += states
        self.ninstr += 1

    def nop(self, n):
        while n > 0:
            k = min(n, 16)
            self._out(f"s_nop {k - 1}", k)
            self.nnops += 1
            n -= k

    def wait(self, *toks):
        need = {}
        for t in toks:
            if t is None:
                continue
            if self.done[t.q] >= t.n:
                continue
            need[t.q] = max(need.get(t.q, 0), t.n)
        if not need:
            return
        parts = []
        for q, n in need.items():
            cnt = self.issued[q] - n
            mx = 63 if q == "vm" else 15
            if cnt > mx:
                cnt = mx
            self.done[q] = self.issued[q] - cnt
            parts.append(("vmcnt" if q == "vm" else "lgkmcnt") + f"({cnt})")
        self._out("s_waitcnt " + " ".join(sorted(parts, reverse=True)))

    def last(self, q):
        return Tok(q, self.issued[q])

    def wait_all(self, vm=True, lg=True, force=False):
        if force:
            parts = (["vmcnt(0)"] if vm else []) + (["lgkmcnt(0)"] if lg else [])
            self._out("s_waitcnt " + " ".join(parts))
            if vm: self.done["vm"] = self.issued["vm"]
            if lg: self.done["lg"] = self.issued["lg"]
            return
        t = []
        if vm: t.append(self.last("vm"))
        if lg: t.append(self.last("lg"))
        self.wait(*t)

    def _issue(self, q):
        self.issued[q] += 1
        return Tok(q, self.issued[q])

    def __call__(self, text):
        text = text.strip()
        op, _, rest = text.partition(" ")
        ops = [o.strip() for o in rest.split(",")] if rest else []
        mods = ""
        if ops:
            parts = ops[-1].split()
            if parts:
                ops[-1] = parts[0]
                mods = " ".join(parts[1:])
        R = [regs_of(o) for o in ops]
        flat = lambda l: [x for y in l for x in y]
        kind = None
        reads, writes, creads = [], [], []
        asyncq = None
        if op.startswith("v_mfma"):
            kind = "mfma"; writes = R[0]; reads = flat(R[1:3]); creads = R[3]
        elif op.startswith("ds_read"):
            kind = "dsr"; writes = R[0]; reads = R[1]; asyncq = "lg"
        elif op.startswith("ds_write"):
            kind = "dsw"; reads = flat(R); asyncq = "lg"
        elif op.startswith("buffer_load") and "lds" in mods.split():
            kind = "dma"; reads = flat(R) + [("s", "m0")]; asyncq = "vm"
        elif op.startswith("buffer_load"):
            kind = "vld"; writes = R[0]; reads = flat(R[1:]); asyncq = "vm"
        elif op.startswith("global_load"):
            kind = "vld"; writes = R[0]; reads = flat(R[1:]); asyncq = "vm"
        elif op.startswith("buffer_store") or op.startswith("buffer_atomic"):
            kind = "vst"; reads = flat(R); asyncq = "vm"
        elif op.startswith("v_permlane"):
            kind = "perm"; writes = flat(R); reads = flat(R)
        elif op.startswith("v_readfirstlane") or op.startswith("v_readlane"):
            kind = "rdlane"; writes = R[0]; reads = flat(R[1:])
        elif op.startswith("v_"):
            kind = "trans" if op.startswith(TRANS) else ("dpp" if "_dpp" in op else "valu")
            writes = R[0]; reads = flat(R[1:])
            if op.startswith(("v_fmac", "v_dot2c")):
                reads = reads + R[0]
        elif op.startswith("s_"):
            kind = "salu"
            if op.startswith(("s_cmp", "s_cbranch", "s_branch", "s_barrier", "s_waitcnt", "s_nop", "s_endpgm", "s_setprio", "s_sleep", "s_bitcmp")):
                reads = flat(R)
            else:
                writes = R[0] if R else []; reads = flat(R[1:])
        else:
            raise ValueError("unknown op " + text)

        toks = [self.pending[r] for r in reads + creads + writes if r in self.pending]
        if toks:
            self.wait(*toks)
            for r in reads + creads + writes:
                self.pending.pop(r, None)

        need = 0
        isv = kind in ("valu", "trans", "dpp", "perm", "rdlane")

        def req(p, n):
            nonlocal need
            need = max(need, n - (self.pos - p - 1))

        for r in reads + creads:
            w = self.lastw.get(r)
            if not w:
                continue
            wk, p, ex = w
            if wk in ("valu", "trans", "dpp", "perm", "rdlane"):
                if r[0] == "s":
                    if isv: req(p, 2)
                    elif kind in ("dma", "vld", "vst"): req(p, 5)
                    elif kind == "salu": req(p, 1)
                else:
                    if kind == "mfma": req(p, 2)
                    elif kind in ("perm", "dpp"): req(p, 2)
                    elif kind == "rdlane": req(p, 1)
                    elif wk == "trans" and kind != "trans": req(p, 1)
            elif wk == "mfma":
                if kind == "mfma":
                    if r in creads and r not in reads:
                        if ex != tuple(creads): req(p, 6)
                    else:
                        req(p, 8)
                else:
                    req(p, 8)
            elif wk == "salu":
                if r == ("s", "m0") and kind == "dma": req(p, 1)
        for r in writes:
            w = self.lastw.get(r)
            if w and w[0] == "mfma" and kind != "mfma":
                req(w[1], 8)
            if w and w[0] == "mfma" and kind == "mfma" and w[2] != tuple(writes):
                req(w[1], 8)
            if isv and r in self.cread:
                req(self.cread[r], 3)
            if r in self.stread:
                req(self.stread[r], 2)
        if need > 0:
            self.nop(need)

        p = self.pos
        self._out(text)
        for r in writes:
            self.lastw[r] = (kind, p, tuple(writes) if kind == "mfma" else None)
        for r in creads:
            self.cread[r] = p
        if kind == "vst" and ("x4" in op or "x3" in op):
            for r in R[0]:
                self.stread[r] = p
        if asyncq:
            t = self._issue(asyncq)
            if kind in ("dsr", "vld"):
                for r in writes:
                    self.pending[r] = t
            return t
        return None

    def text(self):
        return "\n".join(self.lines) + "\n"


def kd(name, vgpr, acc, sgpr=102):
    return f"""
.section .rodata,"a"
.p2align 6
.amdhsa_kernel {name}
  .amdhsa_next_free_vgpr {vgpr}
  .amdhsa_next_free_sgpr {sgpr}
  .amdhsa_accum_offset {acc}
  .amdhsa_group_segment_fixed_size 0
  .amdhsa_kernarg_size 64
  .amdhsa_user_sgpr_count 2
  .amdhsa_user_sgpr_kernarg_segment_ptr 1
  .amdhsa_system_sgpr_workgroup_id_x 1
  .amdhsa_float_denorm_mode_32 3
.end_amdhsa_kernel
.text
"""
```

```python
import sys, struct, math
from asmgen import Gen, v, a, s, kd, Tok

WS = 268435456
STAMP_OFF = WS - (4 << 20)
SLAB = 126 * 1024
LDS_L = 81920
LDS_RING = 86016
LDS_BYTES = LDS_RING + 4 * 16384
HALF = 40960

def f32(x): return "0x%08x" % struct.unpack("<I", struct.pack("<f", x))[0]

S_W = 3
SRD_X, SRD_K, SRD_V, SRD_WQ, SRD_WO, SRD_P = 4, 8, 12, 16, 20, 24
S_RING = 28
S_B, S_H, S_R = 32, 33, 34
S_T = 35
S_PTR = 36
S_SO = 48
S_XM = 49
S_XM3 = 50
S_FLAG = 51
S_XO = 52
S_WQO = 59
S_SC = 74
S_T2 = 76
S_T3 = 77
S_ST = 78
S_CNT = 79
S_STAMP = 80

V_T = 1
V_WO = 5
V_NR = 6
V_NX = 8
V_F = 10
V_QW = 12
V_LW = 13
V_LR = 14
V_PW = 15
V_OW = 17
V_DWQ = 18
V_DK = 22
V_DV = 26
V_DWO = 30
V_DX = 34
V_L8 = 37
V_TMP = 38
V_ONE = 44
V_ACC = 48
V_A = 128
V_B = 160
V_PK = 200
V_RI = 240
V_LS = 245


class Opt:
    stamps = False
    kflag = "nt"
    vflag = "nt"
    wqflag = "nt"
    woflag = "nt"
    xflag = ""
    stflag = "sc1"
    rdflag = ""
    rot = True


def stamp(g, o, i):
    if o.stamps:
        g(f"s_memrealtime {s(S_STAMP + 2 * i, 2)}")


def prologue(g, o):
    stamp(g, o, 0)
    g("s_cmp_ge_u32 s2, 256")
    g("s_cbranch_scc1 L_k1_end")
    g(f"s_load_dwordx8 {s(S_PTR, 8)}, s[0:1], 0")
    g(f"s_load_dwordx2 {s(S_PTR + 8, 2)}, s[0:1], 32")
    g(f"s_load_dwordx2 {s(S_PTR + 10, 2)}, s[0:1], 56")
    g("v_lshrrev_b32 v1, 6, v0")
    g("v_and_b32 v0, 63, v0")
    g(f"v_readfirstlane_b32 {s(S_W)}, v1")
    g(f"s_lshr_b32 {s(S_T)}, s2, 3")
    g(f"s_and_b32 {s(S_R)}, {s(S_T)}, 1")
    g(f"s_lshr_b32 {s(S_B)}, {s(S_T)}, 1")
    g(f"s_and_b32 {s(S_B)}, {s(S_B)}, 7")
    g(f"s_lshr_b32 {s(S_T2)}, {s(S_T)}, 4")
    g(f"s_and_b32 {s(S_H)}, s2, 7")
    g(f"s_lshl_b32 {s(S_T3)}, {s(S_T2)}, 3")
    g(f"s_add_u32 {s(S_H)}, {s(S_H)}, {s(S_T3)}")
    if o.rot:
        g(f"s_and_b32 {s(S_T)}, {s(S_T)}, 15")
        g(f"s_mul_i32 {s(S_T2)}, {s(S_T2)}, 3")
        g(f"s_add_u32 {s(S_T)}, {s(S_T)}, {s(S_T2)}")
        g(f"s_mul_i32 {s(S_T2)}, {s(S_T)}, 37")
        g(f"s_lshr_b32 {s(S_T2)}, {s(S_T2)}, 8")
        g(f"s_mul_i32 {s(S_T2)}, {s(S_T2)}, 7")
        g(f"s_sub_u32 {s(S_T)}, {s(S_T)}, {s(S_T2)}")
    else:
        g(f"s_mov_b32 {s(S_T)}, 0")
    for it in range(7):
        g(f"s_lshl_b32 {s(S_XO + it)}, {s(S_T)}, 7")
        g(f"s_lshl_b32 {s(S_WQO + 2 * it)}, {s(S_T)}, 19")
        g(f"s_add_u32 {s(S_WQO + 2 * it + 1)}, {s(S_WQO + 2 * it)}, 0x40000")
        if it < 6:
            g(f"s_add_u32 {s(S_T)}, {s(S_T)}, 1")
            g(f"s_cmp_eq_u32 {s(S_T)}, 7")
            g(f"s_cselect_b32 {s(S_T)}, 0, {s(S_T)}")
    g(f"s_lshl_b32 {s(S_T)}, {s(S_W)}, 14")
    for i in range(4):
        g(f"s_add_u32 {s(S_RING + i)}, {s(S_T)}, {LDS_RING + 4096 * i}")
    g(f"s_lshl_b32 {s(S_XM)}, {s(S_W)}, 11")
    g(f"s_lshl_b32 {s(S_XM3)}, {s(S_W)}, 9")
    g(f"s_add_u32 {s(S_XM3)}, {s(S_XM3)}, 8192")
    q, pos, t0, t1, t2 = V_TMP, V_TMP + 1, V_TMP + 2, V_TMP + 3, V_TMP + 4
    g(f"v_lshrrev_b32 {v(q)}, 3, v0")
    g(f"v_and_b32 {v(pos)}, 7, v0")
    g(f"v_and_b32 {v(t0)}, 6, {v(q)}")
    g(f"v_xor_b32 {v(t0)}, {v(t0)}, {v(pos)}")
    g(f"v_lshlrev_b32 {v(t0)}, 4, {v(t0)}")
    g(f"v_and_b32 {v(t1)}, 4, {v(q)}")
    g(f"v_add_u32 {v(t1)}, {v(t1)}, {v(q)}")
    g(f"v_lshl_add_u32 {v(V_DWQ)}, {v(t1)}, 13, {v(t0)}")
    for j, kb in enumerate([0, 16, 4, 20]):
        if j: g(f"v_add_u32 {v(V_DWQ + j)}, {kb * 8192 - 1024 * j}, {v(V_DWQ)}")
    g(f"v_lshl_add_u32 {v(V_DV)}, {v(q)}, 9, {v(t0)}")
    g(f"v_mul_u32_u24 {v(t1)}, 896, {v(q)}")
    g(f"v_add_u32 {v(V_DWO)}, {v(t1)}, {v(t0)}")
    g(f"v_lshrrev_b32 {v(t0)}, 1, {v(q)}")
    g(f"v_xor_b32 {v(t0)}, {v(t0)}, {v(pos)}")
    g(f"v_lshlrev_b32 {v(t0)}, 4, {v(t0)}")
    g(f"v_xor_b32 {v(t2)}, 64, {v(t0)}")
    g(f"s_mul_i32 {s(S_T)}, {s(S_W)}, {16 * 896}")
    g(f"v_add3_u32 {v(V_DX)}, {v(t1)}, {v(t0)}, {s(S_T)}")
    g(f"s_add_u32 {s(S_T)}, {s(S_T)}, {8 * 896 - 1024}")
    g(f"v_add3_u32 {v(V_DX + 1)}, {v(t1)}, {v(t2)}, {s(S_T)}")
    g(f"s_lshl_b32 {s(S_T)}, {s(S_W)}, 5")
    g(f"v_xor_b32 {v(V_DX + 2)}, {s(S_T)}, {v(t0)}")
    g(f"s_mul_i32 {s(S_T)}, {s(S_W)}, {4 * 896}")
    g(f"s_add_u32 {s(S_T)}, {s(S_T)}, {64 * 896}")
    g(f"v_add3_u32 {v(V_DX + 2)}, {v(t1)}, {v(V_DX + 2)}, {s(S_T)}")
    g(f"v_lshl_add_u32 {v(t0)}, {v(q)}, 9, {v(t0)}")
    g(f"v_lshl_add_u32 {v(t2)}, {v(q)}, 9, {v(t2)}")
    g(f"v_add_u32 {v(V_DK)}, 2048, {v(t0)}")
    g(f"v_add_u32 {v(V_DK + 1)}, {4096 - 1024 + 2048}, {v(t2)}")
    g(f"v_add_u32 {v(V_DK + 2)}, {128 - 2048 + 2048}, {v(t0)}")
    g(f"v_add_u32 {v(V_DK + 3)}, {4096 + 128 - 3072 + 2048}, {v(t2)}")
    g("s_waitcnt lgkmcnt(0)")
    def srd(dst, ptr, off, total, bias=0):
        if bias:
            g(f"s_sub_u32 {s(ptr)}, {s(ptr)}, {bias}")
            g(f"s_subb_u32 {s(ptr + 1)}, {s(ptr + 1)}, 0")
        g(f"s_add_u32 {s(dst)}, {s(ptr)}, {s(off)}")
        g(f"s_addc_u32 {s(dst + 1)}, {s(ptr + 1)}, 0")
        g(f"s_sub_u32 {s(dst + 2)}, {total + bias}, {s(off)}")
        g(f"s_mov_b32 {s(dst + 3)}, 0x20000")
    g(f"s_mul_i32 {s(S_T)}, {s(S_B)}, 144")
    g(f"s_mul_i32 {s(S_T2)}, {s(S_R)}, 80")
    g(f"s_add_u32 {s(S_T)}, {s(S_T)}, {s(S_T2)}")
    g(f"s_mul_i32 {s(S_T)}, {s(S_T)}, 896")
    srd(SRD_X, S_PTR, S_T, 8 * 144 * 896)
    g(f"s_lshl_b32 {s(S_T)}, {s(S_H)}, 9")
    g(f"s_lshl_b32 {s(S_T2)}, {s(S_W)}, 7")
    g(f"s_add_u32 {s(S_T)}, {s(S_T)}, {s(S_T2)}")
    srd(SRD_WQ, S_PTR + 6, S_T, 448 * 8192)
    g(f"s_lshl_b32 {s(S_T3)}, {s(S_B)}, 4")
    g(f"s_add_u32 {s(S_T3)}, {s(S_T3)}, {s(S_H)}")
    g(f"s_lshl_b32 {s(S_T)}, {s(S_T3)}, 18")
    g(f"s_add_u32 {s(S_T2)}, {s(S_T)}, {s(S_T2)}")
    srd(SRD_V, S_PTR + 4, S_T2, 1 << 25)
    g(f"s_lshl_b32 {s(S_T2)}, {s(S_W)}, 16")
    g(f"s_add_u32 {s(S_T)}, {s(S_T)}, {s(S_T2)}")
    srd(SRD_K, S_PTR + 2, S_T, 1 << 25, 2048)
    g(f"s_lshl_b32 {s(S_T)}, {s(S_H)}, 3")
    g(f"s_add_u32 {s(S_T)}, {s(S_T)}, {s(S_W)}")
    g(f"s_mul_i32 {s(S_T)}, {s(S_T)}, {32 * 896}")
    srd(SRD_WO, S_PTR + 8, S_T, 4096 * 896)
    g(f"s_mul_i32 {s(S_T)}, {s(S_T3)}, {SLAB}")
    srd(SRD_P, S_PTR + 10, S_T, WS)


def late_setup(g, NT, obase):
    t0, t1, t2, gg, row = V_TMP, V_TMP + 1, V_TMP + 2, V_TMP + 3, V_TMP + 4
    for j in range(1, 4):
        g(f"v_add_u32 {v(V_DV + j)}, {(4096 - 1024) * j}, {v(V_DV)}")
        g(f"v_add_u32 {v(V_DWO + j)}, {(8 * 896 - 1024) * j}, {v(V_DWO)}")
    g(f"v_lshrrev_b32 {v(gg)}, 4, v0")
    g(f"v_and_b32 {v(row)}, 15, v0")
    g(f"v_lshrrev_b32 {v(t0)}, 2, v0")
    g(f"v_and_b32 {v(t1)}, 6, {v(t0)}")
    g(f"v_bfe_u32 {v(t2)}, v0, 1, 1")
    g(f"v_or_b32 {v(t1)}, {v(t1)}, {v(t2)}")
    g(f"v_lshlrev_b32 {v(t1)}, 4, {v(t1)}")
    g(f"v_lshl_add_u32 {v(t1)}, {v(t0)}, 7, {v(t1)}")
    g(f"v_and_b32 {v(t2)}, 1, v0")
    g(f"v_lshl_add_u32 {v(t1)}, {v(t2)}, 3, {v(t1)}")
    for t in range(4):
        g(f"v_xor_b32 {v(t2)}, {32 * t}, {v(t1)}")
        g(f"v_add_u32 {v(V_T + t)}, {s(S_RING)}, {v(t2)}")
    g(f"s_lshl_b32 {s(S_T)}, {s(S_W)}, 5")
    g(f"v_xor_b32 {v(t2)}, {s(S_T)}, {v(t1)}")
    g(f"v_add_u32 {v(V_WO)}, {LDS_RING}, {v(t2)}")
    g(f"v_lshrrev_b32 {v(t0)}, 1, {v(row)}")
    g(f"v_xor_b32 {v(t0)}, {v(t0)}, {v(gg)}")
    g(f"v_lshlrev_b32 {v(t0)}, 4, {v(t0)}")
    g(f"v_lshl_add_u32 {v(V_NX)}, {v(row)}, 7, {v(t0)}")
    g(f"v_xor_b32 {v(V_NX + 1)}, 64, {v(V_NX)}")
    g(f"v_add_u32 {v(V_NR)}, {s(S_RING)}, {v(V_NX)}")
    g(f"v_add_u32 {v(V_NR + 1)}, {s(S_RING)}, {v(V_NX + 1)}")
    g(f"v_lshlrev_b32 {v(V_F)}, 4, v0")
    g(f"v_add_u32 {v(V_F + 1)}, {HALF}, {v(V_F)}")
    g(f"v_lshlrev_b32 {v(V_L8)}, 3, v0")
    g(f"v_lshrrev_b32 {v(t0)}, 1, {v(gg)}")
    g(f"v_lshl_add_u32 {v(t0)}, {v(t0)}, 4, {v(row)}")
    g(f"v_lshlrev_b32 {v(t0)}, 4, {v(t0)}")
    g(f"v_and_b32 {v(t1)}, 1, {v(gg)}")
    g(f"v_lshl_add_u32 {v(t0)}, {v(t1)}, 3, {v(t0)}")
    g(f"s_mul_i32 {s(S_T)}, {s(S_W)}, {2 * NT * 1024}")
    g(f"v_add_u32 {v(V_QW)}, {s(S_T)}, {v(t0)}")
    g(f"v_add_u32 {v(V_OW)}, {s(S_T)}, {v(V_F + (1 if obase else 0))}")
    g(f"s_mul_i32 {s(S_T)}, {s(S_W)}, {NT * 1024}")
    g(f"v_add_u32 {v(V_PW)}, {s(S_T)}, {v(V_F)}")
    g(f"v_add_u32 {v(V_PW + 1)}, {s(S_T)}, {v(V_F + 1)}")
    g(f"v_lshlrev_b32 {v(t0)}, 4, {v(row)}")
    g(f"v_add_u32 {v(V_LR)}, {LDS_L}, {v(t0)}")
    g(f"s_lshl_b32 {s(S_T)}, {s(S_W)}, 2")
    g(f"v_add_u32 {v(V_LW)}, {s(S_T)}, {v(V_LR)}")
    for i in range(4):
        g(f"v_mov_b32 {v(V_ONE + i)}, 0x3f803f80")
    sc = f32(math.log2(math.e) / 16.0)
    g(f"s_mov_b32 {s(S_SC)}, {sc}")
    g(f"s_mov_b32 {s(S_SC + 1)}, {sc}")
    g(f"s_mov_b32 {s(S_FLAG)}, 0")


class F:
    def __init__(self, fn, cost=1, at=0):
        self.fn, self.cost, self.at = fn, cost, at


def mfma(d, A, B, first):
    return f"v_mfma_f32_16x16x32_bf16 {d}, {A}, {B}, {'0' if first else d}"


def run_step(g, mf, qa, qb, drain_b=False):
    n = len(mf)
    for i, m in enumerate(mf):
        g(m)
        budget = 2
        sal = 1
        took_a = 0
        while True:
            if qa and qa[0].at <= i and qa[0].cost == 0 and (sal > 0 or budget > 0):
                if sal > 0: sal -= 1
                else: budget -= 1
                qa.pop(0).fn()
                continue
            sal = 0
            b_ready = qb and qb[0].at <= i
            if qa and qa[0].at <= i and budget >= qa[0].cost and (took_a == 0 or not b_ready):
                f = qa.pop(0); budget -= f.cost; took_a += 1; f.fn()
                continue
            if b_ready and (budget >= qb[0].cost or (qb[0].cost > 2 and budget == 2)):
                f = qb.pop(0); budget -= f.cost; f.fn()
                if f.cost > 2: budget = 2
                continue
            break
    while qa:
        qa.pop(0).fn()
    for f in qb:
        f.at = 0
    if drain_b:
        while qb:
            qb.pop(0).fn()


def body(g, o, NT, tag):
    r = 0 if NT == 5 else 1
    ktiles = list(range(8))
    def pgroup(pi):
        return (1 - (pi >> 1), pi & 1)
    obase = 0
    pv = []
    for half in (0, 1):
        for idx in (0, 1):
            pi = [p for p in range(4) if pgroup(p) == (half, idx)][0]
            for w2 in range(4):
                pv.append((half, idx * 4 + w2, 128 * w2 + 16 * ktiles[2 * pi]))

    blocks = [("wq", n) for n in range(14)] + [("k", n) for n in range(16)] + \
             [("v", n) for n in range(16)] + [("wo", n) for n in range(14)]
    NB = len(blocks)
    btok = [None] * NB

    def dma_fillers(n, at=0):
        if n >= NB: return []
        ty, i = blocks[n]
        fl = []
        def S(txt): fl.append(F(lambda: g(txt), 0, at))
        def D(txt, last=False):
            def fn():
                t = g(txt)
                if last: btok[n] = t
            fl.append(F(fn, 1, at))
        if ty == "wq":
            it, e = i >> 1, i & 1
            if e == 0:
                S(f"s_add_u32 m0, {s(S_XM)}, {it * NT * 2048}")
                D(f"buffer_load_dwordx4 {v(V_DX)}, {s(SRD_X, 4)}, {s(S_XO + it)} offen {o.xflag} lds")
                D(f"buffer_load_dwordx4 {v(V_DX + 1)}, {s(SRD_X, 4)}, {s(S_XO + it)} offen offset:1024 {o.xflag} lds")
                if NT == 5:
                    S(f"s_add_u32 m0, {s(S_XM3)}, {it * NT * 2048}")
                    def third():
                        g("s_mov_b32 exec_hi, 0")
                        g(f"buffer_load_dwordx4 {v(V_DX + 2)}, {s(SRD_X, 4)}, {s(S_XO + it)} offen {o.xflag} lds")
                        g("s_mov_b32 exec_hi, -1")
                    fl.append(F(third, 2, at))
            vo, srd, so, flag = V_DWQ, SRD_WQ, s(S_WQO + i), o.wqflag
        else:
            if ty == "k":
                off = ktiles[i >> 1] * 8192 + (i & 1) * 256
                vo, srd, flag = V_DK, SRD_K, o.kflag
            elif ty == "v":
                off = pv[i][2] * 512
                vo, srd, flag = V_DV, SRD_V, o.vflag
            else:
                off = (i & 1) * 128 * 896 + (i >> 1) * 128
                vo, srd, flag = V_DWO, SRD_WO, o.woflag
            S(f"s_mov_b32 {s(S_SO)}, {off}")
            so = s(S_SO)
        S(f"s_mov_b32 m0, {s(S_RING + (n & 3))}")
        for j in range(4):
            D(f"buffer_load_dwordx4 {v(vo + j)}, {s(srd, 4)}, {so} offen offset:{1024 * j} {flag} lds", j == 3)
        return fl

    def a_reads(n, at=0):
        ty, i = blocks[n]
        A = V_A + 16 * (n & 1)
        so = (n & 3) * 4096
        fl = []
        def R(txt): fl.append(F(lambda: g(txt), 1, at))
        for t in range(4):
            if ty == "k":
                R(f"ds_read_b128 {v(A + 4 * t, 4)}, {v(V_NR + (t & 1))} offset:{so + (t >> 1) * 2048}")
            else:
                ad = v(V_WO) if ty == "wo" else v(V_T + t)
                of = so + (t * 16384 if ty == "wo" else 0)
                R(f"ds_read_b64_tr_b16 {v(A + 4 * t, 2)}, {ad} offset:{of}")
                R(f"ds_read_b64_tr_b16 {v(A + 4 * t + 2, 2)}, {ad} offset:{of + 2048}")
        return fl

    xbump = [0]
    def b_reads(n, at=0):
        ty, i = blocks[n]
        B = V_B + 20 * (n & 1)
        fl = []
        def R(txt): fl.append(F(lambda: g(txt), 1, at))
        if ty == "wq":
            it, e = i >> 1, i & 1
            if it == 4 and e == 0:
                xbump[0] = 32768
                R(f"v_add_u32 {v(V_NX)}, 32768, {v(V_NX)}")
                R(f"v_add_u32 {v(V_NX + 1)}, 32768, {v(V_NX + 1)}")
            for rt in range(NT):
                R(f"ds_read_b128 {v(B + 4 * rt, 4)}, {v(V_NX + e)} offset:{(it * NT + rt) * 2048 - xbump[0]}")
        elif ty == "v":
            half, idx, _ = pv[i]
            for rt in range(NT):
                R(f"ds_read_b128 {v(B + 4 * rt, 4)}, {v(V_F + half)} offset:{(idx * NT + rt) * 1024}")
        return fl

    def wait_block(n, bar, at):
        fl = [F(lambda: g.wait(btok[n]), 0, at)]
        if bar: fl.append(F(lambda: g("s_barrier"), 0, at))
        return fl

    def run(fl):
        for f in fl: f.fn()

    acc = lambda t, rt: V_ACC + 4 * (t * NT + rt)

    for n in range(4):
        run(dma_fillers(n))
    late_setup(g, NT, obase)
    run(wait_block(0, True, 0))
    stamp(g, o, 1)
    run(b_reads(0)); run(a_reads(0))

    qb = []
    for n in range(14):
        A = V_A + 16 * (n & 1); B = V_B + 20 * (n & 1)
        g.wait(g.last("lg"))
        mf = [mfma(v(acc(t, rt), 4), v(A + 4 * t, 4), v(B + 4 * rt, 4), n == 0) for rt in range(NT) for t in range(4)]
        wat = 4 if NT == 5 else 2
        qa = dma_fillers(n + 4) + wait_block(n + 1, n < 13 and (n & 1) == 1, wat) + b_reads(n + 1, wat) + a_reads(n + 1, wat)
        if n == 13:
            for rt in range(NT):
                for t in range(4):
                    c = acc(t, rt); pk = V_PK + 2 * ((rt * 4 + t) % 8)
                    at = rt * 4 + t + 4
                    for h2 in range(2):
                        qb.append(F(lambda c=c, h2=h2: g(f"v_pk_mul_f32 {v(c + 2 * h2, 2)}, {v(c + 2 * h2, 2)}, {s(S_SC, 2)}"), 1, at))
                    for h2 in range(2):
                        qb.append(F(lambda c=c, h2=h2, pk=pk: g(f"v_cvt_pk_bf16_f32 {v(pk + h2)}, {v(c + 2 * h2)}, {v(c + 2 * h2 + 1)}"), 1, at))
                    qb.append(F(lambda t=t, rt=rt, pk=pk: g(f"ds_write_b64 {v(V_QW)}, {v(pk, 2)} offset:{((t >> 1) * NT + rt) * 1024 + (t & 1) * 512}"), 1, at))
        run_step(g, mf, qa, qb, drain_b=(n == 13))
    g.wait(g.last("lg"))
    g("s_barrier")
    stamp(g, o, 2)

    BF = lambda ks, rt: a(4 * (ks * NT + rt), 4)
    sacc = lambda tile, rt: V_ACC + 20 * (tile & 1) + 4 * rt
    lacc = lambda rt: V_ACC + 40 + 4 * rt
    pk = lambda rt: V_ACC + 60 + 4 * rt

    def frag_reads(base):
        return [F(lambda ks=ks, rt=rt: g(f"ds_read_b128 {BF(ks, rt)}, {v(V_F + (1 if base else 0))} offset:{(ks * NT + rt) * 1024}"), 1, 0)
                for ks in range(8) for rt in range(NT)]

    def softmax_fillers(tile):
        fl = []
        odd = tile & 1
        pi = tile >> 1
        half, idx = pgroup(pi)
        for rt in range(NT):
            c = sacc(tile, rt)
            for i in range(4):
                fl.append(F(lambda c=c, i=i: g(f"v_exp_f32 {v(c + i)}, {v(c + i)}"), 2, 2))
            for h2 in range(2):
                fl.append(F(lambda c=c, h2=h2, rt=rt: g(f"v_cvt_pk_bf16_f32 {v(pk(rt) + 2 * odd + h2)}, {v(c + 2 * h2)}, {v(c + 2 * h2 + 1)}"), 1, 2))
            if odd:
                fl.append(F(lambda rt=rt: g(f"ds_write_b128 {v(V_PW + half)}, {v(pk(rt), 4)} offset:{(idx * 4 * NT + rt) * 1024}"), 1, 2))
        if odd:
            for rt in range(NT):
                fl.append(F(lambda rt=rt: g(mfma(v(lacc(rt), 4), v(V_ONE, 4), v(pk(rt), 4), pi == 0)), 3, 2))
        return fl

    def tile_major(n0, nsteps, fr, accf, epi, coop, midbar):
        qb = []
        LOOK = 10
        run(fr[:LOOK]); fr = fr[LOOK:]
        for m in range(nsteps):
            n = n0 + m
            tile, hb = m >> 1, m & 1
            A = V_A + 16 * (n & 1)
            if m >= 2:
                g.wait(atok[0])
            mf = [mfma(v(accf(tile, rt), 4), v(A + 4 * kk, 4), BF(4 * hb + kk, rt), hb == 0 and kk == 0)
                  for kk in range(4) for rt in range(NT)]
            nxt = []
            if n + 1 < NB:
                last_of_phase = (m == nsteps - 1)
                if coop:
                    nxt = wait_block(n + 1, True, 3) + dma_fillers(n + 4, 3) + a_reads(n + 1, 3)
                else:
                    nxt = dma_fillers(n + 4) + wait_block(n + 1, False, 6) + a_reads(n + 1, 6)
                def mark(): atok[0] = g.last("lg")
                nxt.append(F(mark, 0, 0))
            if m < 2:
                k = 4 * NT if m == 0 else len(fr)
                mine, fr = fr[:k], fr[k:]
                if coop and m == 0:
                    nxt.insert(0, F(lambda t=atok[0]: g.wait(t), 0, 3))
                if coop and m == 1:
                    nxt.insert(0, F(lambda t=atok[0]: g.wait(t), 0, 3))
                if not coop:
                    nxt.insert(0, F(lambda t=atok[0]: g.wait(t), 0, 0))
                run_step(g, mf, mine, nxt, drain_b=True)
            else:
                if m == midbar:
                    nxt.insert(0, F(lambda: g("s_barrier"), 0, 0))
                if hb == 0:
                    assert not qb, len(qb)
                    qb = epi(tile - 1)
                run_step(g, mf, nxt, qb, drain_b=(hb == 1))
        run(epi(nsteps // 2 - 1))

    atok = [g.last("lg")]
    tile_major(14, 16, frag_reads(0), sacc, softmax_fillers, False, 8)

    def write_l():
        for rt in range(NT):
            g(f"ds_write_b32 {v(V_LW)}, {v(lacc(rt))} offset:{rt * 256}")
    write_l()
    g.wait(g.last("lg"))
    g("s_barrier")
    stamp(g, o, 3)

    g.label(f"L_pv_{tag}")
    for rt in range(NT):
        g(f"ds_read_b128 {v(V_PK + 4 * rt, 4)}, {v(V_LR)} offset:{rt * 256}")
    run(b_reads(30))
    for rt in range(NT):
        p = V_PK + 4 * rt
        g(f"v_add_f32 {v(p)}, {v(p)}, {v(p + 1)}")
        g(f"v_add_f32 {v(p + 2)}, {v(p + 2)}, {v(p + 3)}")
        g(f"v_add_f32 {v(V_LS + rt)}, {v(p)}, {v(p + 2)}")
        g(f"v_rcp_f32 {v(V_RI + rt)}, {v(V_LS + rt)}")
    g(f"v_max_f32 {v(V_TMP)}, {v(V_LS)}, {v(V_RI)}")
    for rt in range(1, NT):
        g(f"v_max3_f32 {v(V_TMP)}, {v(V_TMP)}, {v(V_LS + rt)}, {v(V_RI + rt)}")
    g(f"v_cmp_lt_f32 vcc, {f32(2.0 ** 60)}, {v(V_TMP)}")
    g.nop(2)
    g(f"s_cbranch_vccz L_pvgo_{tag}")
    g(f"s_cmp_eq_u32 {s(S_FLAG)}, 0")
    g(f"s_cbranch_scc1 L_slow_{tag}")
    g.label(f"L_pvgo_{tag}")
    qb = []
    for m in range(16):
        n = 30 + m
        A = V_A + 16 * (n & 1); B = V_B + 20 * (n & 1)
        g.wait(g.last("lg"))
        mf = [mfma(v(acc(t, rt), 4), v(A + 4 * t, 4), v(B + 4 * rt, 4), m == 0) for rt in range(NT) for t in range(4)]
        wat = 4 if NT == 5 else 2
        qa = []
        if m == 9: qa.append(F(lambda: g("s_barrier"), 0, 0))
        qa += dma_fillers(n + 4)
        if m < 15:
            qa += b_reads(n + 1, 0) + wait_block(n + 1, False, wat) + a_reads(n + 1, wat)
        else:
            for rt in range(NT):
                for p in range(2):
                    pkr = V_PK + 4 * ((rt * 2 + p) % 4)
                    at = rt * 4 + 2 * p + 5
                    for t in (2 * p, 2 * p + 1):
                        c = acc(t, rt)
                        for i in range(4):
                            qb.append(F(lambda c=c, i=i, rt=rt: g(f"v_mul_f32 {v(c + i)}, {v(c + i)}, {v(V_RI + rt)}"), 1, at))
                        for h2 in range(2):
                            qb.append(F(lambda c=c, h2=h2, t=t, pkr=pkr: g(f"v_cvt_pk_bf16_f32 {v(pkr + 2 * (t & 1) + h2)}, {v(c + 2 * h2)}, {v(c + 2 * h2 + 1)}"), 1, at))
                    qb.append(F(lambda p=p, rt=rt, pkr=pkr: g(f"ds_write_b128 {v(V_OW)}, {v(pkr, 4)} offset:{(p * NT + rt) * 1024}"), 1, at))
        run_step(g, mf, qa, qb, drain_b=(m == 15))
    g.wait(btok[46], g.last("lg"))
    g("s_barrier")
    stamp(g, o, 4)

    def out_fillers(st):
        fl = []
        base = V_ACC + 40 + 12 * (st & 1)
        for rt in range(NT):
            c = sacc(st, rt)
            for h2 in range(2):
                fl.append(F(lambda c=c, h2=h2, rt=rt: g(f"v_cvt_pk_bf16_f32 {v(base + 2 * rt + h2)}, {v(c + 2 * h2)}, {v(c + 2 * h2 + 1)}"), 1, 2))
            if rt in (1, 3):
                pidx = 2 * r + (rt >> 1)
                def stx4(rt=rt, pidx=pidx):
                    g(f"s_add_u32 {s(S_ST)}, {s(S_T2)}, {(pidx * 28 + 4 * st) * 1024}")
                    g(f"buffer_store_dwordx4 {v(base + 2 * (rt - 1), 4)}, {v(V_F)}, {s(SRD_P, 4)}, {s(S_ST)} offen {o.stflag}")
                fl.append(F(stx4, 2, 2))
            if rt == 4:
                def stx2():
                    g(f"s_add_u32 {s(S_ST)}, {s(S_T3)}, {112 * 1024 + 4 * st * 512}")
                    g(f"buffer_store_dwordx2 {v(base + 8, 2)}, {v(V_L8)}, {s(SRD_P, 4)}, {s(S_ST)} offen {o.stflag}")
                fl.append(F(stx2, 2, 2))
        return fl
    g(f"s_lshl_b32 {s(S_T2)}, {s(S_W)}, 10")
    g(f"s_lshl_b32 {s(S_T3)}, {s(S_W)}, 9")
    run(a_reads(46))
    atok[0] = g.last("lg")
    tile_major(46, 14, frag_reads(obase), sacc, out_fillers, True, -1)
    stamp(g, o, 5)
    if o.stamps:
        g.wait_all(force=True)
        stamp(g, o, 6)
        g("s_waitcnt lgkmcnt(0)")
        g(f"s_mov_b32 {s(SRD_P)}, {s(S_PTR + 10)}")
        g(f"s_mov_b32 {s(SRD_P + 1)}, {s(S_PTR + 11)}")
        g(f"s_mov_b32 {s(SRD_P + 2)}, {WS}")
        g(f"s_lshl_b32 {s(S_T)}, s2, 2")
        g(f"s_add_u32 {s(S_T)}, {s(S_T)}, {s(S_W)}")
        g(f"s_lshl_b32 {s(S_T)}, {s(S_T)}, 7")
        g(f"s_add_u32 {s(S_T)}, {s(S_T)}, {STAMP_OFF}")
        g(f"v_mov_b32 v1, 0")
        for i in range(7):
            g(f"v_mov_b32 v2, {s(S_STAMP + 2 * i)}")
            g(f"v_mov_b32 v3, {s(S_STAMP + 2 * i + 1)}")
            g(f"buffer_store_dwordx2 v[2:3], v1, {s(SRD_P, 4)}, {s(S_T)} offen offset:{8 * i}")
            g.nop(2)
    g("s_endpgm")

    g.label(f"L_slow_{tag}")
    g.reset_state()
    KF = 208
    VK = V_TMP + 1
    VM = V_LS
    VP = V_TMP + 2
    g.wait_all(force=True)
    g.nop(8)
    g("s_barrier")
    g(f"s_mov_b32 {s(S_FLAG)}, 1")
    g(f"v_and_b32 {v(VK)}, 15, v0")
    g(f"v_lshlrev_b32 {v(VK)}, 9, {v(VK)}")
    g(f"v_lshrrev_b32 {v(V_TMP)}, 4, v0")
    g(f"v_lshl_add_u32 {v(VK)}, {v(V_TMP)}, 4, {v(VK)}")
    g(f"v_add_u32 {v(VK)}, 2048, {v(VK)}")
    for rt in range(NT):
        g(f"v_mov_b32 {v(VM + rt)}, 0xff800000")

    def slow_tile(par):
        for ks in range(8):
            g(f"buffer_load_dwordx4 {v(KF + 4 * ks, 4)}, {v(VK)}, {s(SRD_K, 4)}, {s(S_SO)} offen offset:{64 * ks}")
        for ks in range(8):
            for rt in range(NT):
                g(mfma(v(sacc(par, rt), 4), v(KF + 4 * ks, 4), BF(ks, rt), ks == 0))
    g(f"s_mov_b32 {s(S_SO)}, 0")
    g.label(f"L_slow1_{tag}")
    slow_tile(0)
    for rt in range(NT):
        c = sacc(0, rt)
        g(f"v_max3_f32 {v(VM + rt)}, {v(VM + rt)}, {v(c)}, {v(c + 1)}")
        g(f"v_max3_f32 {v(VM + rt)}, {v(VM + rt)}, {v(c + 2)}, {v(c + 3)}")
    g(f"s_add_u32 {s(S_SO)}, {s(S_SO)}, 8192")
    g(f"s_cmp_lt_u32 {s(S_SO)}, 65536")
    g(f"s_cbranch_scc1 L_slow1_{tag}")
    for rt in range(NT):
        m = VM + rt
        for op in ("v_permlane32_swap_b32", "v_permlane16_swap_b32"):
            g(f"v_mov_b32 {v(V_TMP)}, {v(m)}")
            g(f"{op} {v(V_TMP)}, {v(m)}")
            g.nop(2)
            g(f"v_max_f32 {v(m)}, {v(m)}, {v(V_TMP)}")
        g(f"ds_write_b32 {v(V_LW)}, {v(m)} offset:{2048 + rt * 256}")
    g.wait_all(force=True)
    g("s_barrier")
    for rt in range(NT):
        p = V_B + 4 * rt
        g(f"ds_read_b128 {v(p, 4)}, {v(V_LR)} offset:{2048 + rt * 256}")
        g(f"v_max3_f32 {v(p)}, {v(p)}, {v(p + 1)}, {v(p + 2)}")
        g(f"v_max_f32 {v(VM + rt)}, {v(p)}, {v(p + 3)}")
    for rt in range(NT):
        for i in range(4):
            g(f"v_mov_b32 {v(lacc(rt) + i)}, 0")
    g(f"s_mov_b32 {s(S_CNT)}, 0")
    g.label(f"L_slow2_{tag}")
    for pi in range(4):
        half, idx = pgroup(pi)
        g(f"s_cmp_eq_u32 {s(S_CNT)}, {pi}")
        g(f"s_cselect_b32 {s(S_SO)}, {ktiles[2 * pi] * 8192}, {s(S_SO)}")
        g(f"s_cselect_b32 {s(S_T)}, {half * HALF + idx * 4 * NT * 1024}, {s(S_T)}")
    g(f"v_add_u32 {v(VP)}, {s(S_T)}, {v(V_PW)}")
    for par in range(2):
        slow_tile(par)
        if par == 0:
            g(f"s_add_u32 {s(S_SO)}, {s(S_SO)}, 8192")
        for rt in range(NT):
            c = sacc(par, rt)
            for i in range(4):
                g(f"v_sub_f32 {v(c + i)}, {v(c + i)}, {v(VM + rt)}")
            for i in range(4):
                g(f"v_exp_f32 {v(c + i)}, {v(c + i)}")
            for h2 in range(2):
                g(f"v_cvt_pk_bf16_f32 {v(pk(rt) + 2 * par + h2)}, {v(c + 2 * h2)}, {v(c + 2 * h2 + 1)}")
    for rt in range(NT):
        g(f"ds_write_b128 {v(VP)}, {v(pk(rt), 4)} offset:{rt * 1024}")
        g(mfma(v(lacc(rt), 4), v(V_ONE, 4), v(pk(rt), 4), False))
    g(f"s_add_u32 {s(S_CNT)}, {s(S_CNT)}, 1")
    g(f"s_cmp_lt_u32 {s(S_CNT)}, 4")
    g.nop(8)
    g(f"s_cbranch_scc1 L_slow2_{tag}")
    write_l()
    g.wait_all(force=True)
    g.nop(8)
    g("s_barrier")
    g(f"s_branch L_pv_{tag}")


def reduce_kernel(g, o):
    if o.stamps: g("s_memrealtime s[40:41]")
    g("s_cmp_ge_u32 s2, 252")
    g("s_cbranch_scc1 L_k2_end")
    g("s_load_dwordx2 s[8:9], s[0:1], 40")
    g("s_load_dwordx2 s[4:5], s[0:1], 56")
    g("v_lshrrev_b32 v1, 6, v0")
    g("v_and_b32 v0, 63, v0")
    g("v_readfirstlane_b32 s3, v1")
    g("v_lshlrev_b32 v1, 4, v0")
    g("s_cmp_ge_u32 s2, 224")
    g("s_cbranch_scc1 L_k2_odd")
    g("s_mul_i32 s12, s2, 9363")
    g("s_lshr_b32 s12, s12, 16")
    g("s_mul_i32 s13, s12, 7")
    g("s_sub_u32 s13, s2, s13")
    g("s_lshr_b32 s14, s12, 2")
    g("s_and_b32 s15, s12, 3")
    g("s_lshl_b32 s13, s13, 2")
    g("s_add_u32 s13, s13, s3")
    g("s_mul_i32 s16, s15, 28")
    g("s_add_u32 s16, s16, s13")
    g("s_lshl_b32 s16, s16, 10")
    g("s_lshl_b32 s17, s15, 5")
    g("s_lshr_b32 s18, s15, 1")
    g("s_lshl_b32 s18, s18, 4")
    g("s_add_u32 s17, s17, s18")
    g("s_mul_i32 s18, s14, 144")
    g("s_add_u32 s17, s17, s18")
    g("s_mul_i32 s17, s17, 896")
    g("s_lshl_b32 s18, s13, 5")
    g("s_add_u32 s17, s17, s18")
    g("v_and_b32 v2, 15, v0")
    g("v_mul_u32_u24 v2, 896, v2")
    g("v_lshrrev_b32 v3, 4, v0")
    g("v_lshl_add_u32 v2, v3, 3, v2")
    g("v_add_u32 v2, s17, v2")
    g(f"v_add_u32 v3, {16 * 896}, v2")
    g("s_branch L_k2_go")
    g.label("L_k2_odd")
    g("s_sub_u32 s12, s2, 224")
    g("s_lshl_b32 s12, s12, 2")
    g("s_add_u32 s12, s12, s3")
    g("s_mul_i32 s14, s12, 4682")
    g("s_lshr_b32 s14, s14, 16")
    g("s_mul_i32 s13, s14, 14")
    g("s_sub_u32 s13, s12, s13")
    g("s_add_u32 s16, s13, 112")
    g("s_lshl_b32 s16, s16, 10")
    g("s_mul_i32 s17, s14, 144")
    g("s_add_u32 s17, s17, 64")
    g("s_mul_i32 s17, s17, 896")
    g("s_lshl_b32 s18, s13, 6")
    g("s_add_u32 s17, s17, s18")
    g("v_and_b32 v2, 7, v0")
    g(f"v_mul_u32_u24 v2, {2 * 896}, v2")
    g("v_lshrrev_b32 v3, 3, v0")
    g("v_lshl_add_u32 v2, v3, 3, v2")
    g("v_add_u32 v2, s17, v2")
    g("v_add_u32 v3, 896, v2")
    g.label("L_k2_go")
    g.reset_state()
    g(f"s_mul_i32 s14, s14, {16 * SLAB}")
    g("s_add_u32 s16, s16, s14")
    g("s_waitcnt lgkmcnt(0)")
    g(f"s_mov_b32 s6, {WS}")
    g("s_mov_b32 s7, 0x20000")
    g(f"s_mov_b32 s10, {8 * 144 * 896}")
    g("s_mov_b32 s11, 0x20000")
    for h in range(16):
        g(f"buffer_load_dwordx4 {v(16 + 4 * h, 4)}, v1, s[4:7], s16 offen {o.rdflag}")
        if h < 15: g(f"s_add_u32 s16, s16, {SLAB}")
    g("s_mov_b32 s20, 0xffff0000")
    for h in range(16):
        for i in range(4):
            src = 16 + 4 * h + i
            if h == 0:
                g(f"v_lshlrev_b32 {v(4 + 2 * i)}, 16, {v(src)}")
                g(f"v_and_b32 {v(5 + 2 * i)}, s20, {v(src)}")
            else:
                g(f"v_lshlrev_b32 v12, 16, {v(src)}")
                g(f"v_and_b32 v13, s20, {v(src)}")
                g(f"v_pk_add_f32 {v(4 + 2 * i, 2)}, {v(4 + 2 * i, 2)}, v[12:13]")
    for i in range(4):
        g(f"v_cvt_pk_bf16_f32 {v(12 + i)}, {v(4 + 2 * i)}, {v(5 + 2 * i)}")
    g("buffer_store_dwordx2 v[12:13], v2, s[8:11], 0 offen")
    g("buffer_store_dwordx2 v[14:15], v3, s[8:11], 0 offen")
    if o.stamps:
        g("s_memrealtime s[42:43]")
        g.wait_all(force=True)
        g("s_memrealtime s[44:45]")
        g("s_waitcnt lgkmcnt(0)")
        g("s_lshl_b32 s12, s2, 2")
        g("s_add_u32 s12, s12, s3")
        g("s_lshl_b32 s12, s12, 7")
        g(f"s_add_u32 s12, s12, {STAMP_OFF}")
        g("v_mov_b32 v1, 0")
        for i in range(3):
            g(f"v_mov_b32 v2, s{40 + 2 * i}")
            g(f"v_mov_b32 v3, s{41 + 2 * i}")
            g(f"buffer_store_dwordx2 v[2:3], v1, s[4:7], s12 offen offset:{8 * (7 + i)}")
            g.nop(2)
    g.label("L_k2_end")
    g("s_endpgm")


HEAD = """; Fused MHA block: out = softmax((x wq) K^T / 16) V wo   (B=8, Sq=144, D=448, H=16, Sk=512, Dh=256, bf16)
; kernarg: x@0 k_cache@8 v_cache@16 wq@24 wo@32 out@40 debug@48 ws@56
; attn_kernel : one workgroup per (batch, head, row half); q-projection, attention and that head's share of the
"""


def build(o):
    g = Gen()
    g.raw(HEAD.rstrip())
    g.raw(f"; @launch kernel=attn_kernel grid=(256,1,1) block=(256,1,1) lds={LDS_BYTES}")
    g.raw("; @launch kernel=sum_kernel grid=(252,1,1) block=(256,1,1) lds=0")
    g.raw('.amdgcn_target "amdgcn-amd-amdhsa--gfx950"\n.text\n.globl attn_kernel\n.p2align 8\n.type attn_kernel,@function')
    g.label("attn_kernel")
    prologue(g, o)
    g(f"s_cmp_eq_u32 {s(S_R)}, 1")
    g("s_cbranch_scc1 L_light")
    g.reset_state(); g.nop(4)
    body(g, o, 5, "h")
    g.raw(".p2align 6")
    g.label("L_light")
    g.reset_state(); g.nop(4)
    body(g, o, 4, "l")
    g.label("L_k1_end")
    g("s_endpgm")
    g.raw(kd("attn_kernel", 512, 256))
    g.raw(".globl sum_kernel\n.p2align 8\n.type sum_kernel,@function")
    g.label("sum_kernel")
    g.reset_state()
    reduce_kernel(g, o)
    g.raw(kd("sum_kernel", 80, 80, 48))
    return g


if __name__ == "__main__":
    o = Opt()
    out = sys.argv[1]
    for kv in sys.argv[2:]:
        k, _, val = kv.partition("=")
        cur = getattr(o, k)
        if isinstance(cur, bool): val = val in ("1", "true", "True")
        elif isinstance(cur, int): val = int(val)
        else: val = val.replace("+", " ")
        setattr(o, k, val)
    g = build(o)
    open(out, "w").write(g.text())
    print(out, "instrs", g.ninstr, "nops", g.nnops, file=sys.stderr)
```

```python
import sys
from asmgen import kd
from gen import WS, STAMP_OFF
def add(src, dst, k, mode, nslots=1008, mult=10):
    s = open(src).read()
    ll = [l for l in s.split("\n") if l.startswith("; @launch kernel=")][-1]
    le = "; @launch kernel=delay_kernel grid=(1,1,1) block=(64,1,1) lds=0"
    L = []
    e = L.append
    e('.globl delay_kernel\n.p2align 8\n.type delay_kernel,@function\ndelay_kernel:')
    e("s_cmp_ge_u32 s2, 1"); e("s_cbranch_scc1 L_dl_end")
    e("s_load_dwordx2 s[4:5], s[0:1], 56")
    e("s_load_dwordx2 s[12:13], s[0:1], 48")
    e("s_waitcnt lgkmcnt(0)")
    e(f"s_mov_b32 s6, {WS}"); e("s_mov_b32 s7, 0x20000")
    e("s_mov_b32 s14, 256"); e("s_mov_b32 s15, 0x20000")
    e("v_lshlrev_b32 v1, 7, v0")
    e("v_mov_b32 v2, -1"); e("v_mov_b32 v3, 0")
    e(f"s_mov_b32 s8, {STAMP_OFF}")
    e("buffer_load_dword v10, v3, s[4:7], s8 offen"); e("s_waitcnt vmcnt(0)")
    e("v_subrev_u32 v10, 0x10000, v10")
    for i in range(15):
        e(f"buffer_load_dword v4, v1, s[4:7], s8 offen")
        e(f"buffer_load_dword v5, v1, s[4:7], s8 offen offset:{8*k}")
        e("s_waitcnt vmcnt(0)")
        e("v_sub_u32 v4, v4, v10"); e("v_sub_u32 v5, v5, v10")
        e("v_min_u32 v2, v2, v4")
        e("v_max_u32 v3, v3, v5" if mode == "max" else "v_add_u32 v3, v3, v5")
        e("s_add_u32 s8, s8, 8192")
    e("s_mov_b32 s20, -1"); e("s_mov_b32 s21, 0")
    e("s_nop 4")
    for l in range(64):
        e(f"v_readlane_b32 s22, v2, {l}"); e(f"v_readlane_b32 s23, v3, {l}"); e("s_nop 1")
        e("s_min_u32 s20, s20, s22")
        e("s_max_u32 s21, s21, s23" if mode == "max" else "s_add_u32 s21, s21, s23")
    if mode != "max":
        e("s_mul_hi_u32 s21, s21, 4473925")
    e("s_sub_u32 s21, s21, s20")
    e("s_min_u32 s21, s21, 20000")
    e("v_mov_b32 v4, s21"); e("v_mov_b32 v5, 0")
    e("buffer_store_dword v4, v5, s[12:15], 0 offen")
    e(f"s_mul_i32 s21, s21, {mult}")
    e("s_memrealtime s[24:25]"); e("s_waitcnt lgkmcnt(0)")
    e("L_dl_spin:")
    e("s_memrealtime s[26:27]"); e("s_waitcnt lgkmcnt(0)")
    e("s_sub_u32 s28, s26, s24"); e("s_cmp_lt_u32 s28, s21"); e("s_cbranch_scc1 L_dl_spin")
    e("L_dl_end:"); e("s_endpgm")
    open(dst, "w").write(s.replace(ll, ll + "\n" + le) + "\n".join(L) + kd("delay_kernel", 16, 16, 40))
if __name__ == "__main__":
    src = sys.argv[1]
    outs = []
    for spec in sys.argv[2:]:
        k, mode = spec.split(":")
        dst = f"d_{k}_{mode}.s"
        add(src, dst, int(k), mode, mult=0 if mode == "zero" else 10)
        outs.append("work/" + dst)
    print(outs)
```

```python
import sys, struct, math
from asmgen import Gen, v, a, s, kd, Tok

WS = 268435456
STAMP_OFF = WS - (4 << 20)
SLAB = 126 * 1024
LDS_L = 81920
LDS_RING = 86016
LDS_BYTES = LDS_RING + 4 * 16384
HALF = 40960

def f32(x): return "0x%08x" % struct.unpack("<I", struct.pack("<f", x))[0]

S_W = 3
SRD_X, SRD_K, SRD_V, SRD_WQ, SRD_WO, SRD_P = 4, 8, 12, 16, 20, 24
S_RING = 28
S_B, S_H, S_R = 32, 33, 34
S_T = 35
S_PTR = 36
S_SO = 48
S_XM = 49
S_XM3 = 50
S_FLAG = 51
S_XO = 52
S_WQO = 59
S_SH = 73
S_SC = 74
S_T2 = 76
S_T3 = 77
S_ST = 78
S_CNT = 79
S_STAMP = 80

V_T = 1
V_WO = 5
V_NR = 6
V_NX = 8
V_F = 10
V_QW = 12
V_LW = 13
V_LR = 14
V_PW = 15
V_OW = 17
V_DWQ = 18
V_DK = 22
V_DV = 26
V_DWO = 30
V_DX = 34
V_L8 = 37
V_TMP = 38
V_ONE = 44
V_ACC = 48
V_A = 128
V_B = 160
V_PK = 200
V_RI = 240
V_LS = 245


class Opt:
    stamps = False
    kflag = "nt"
    vflag = "nt"
    wqflag = "nt"
    woflag = "nt"
    xflag = ""
    stflag = "sc1"
    rdflag = ""
    rot = True
    codepf = False
    wopf = -1
    xup = False
    nost = False
    cyc = False
    slist = "start,first,q,p,o,out,drain"
    pfflag = ""
    hmap = 0


def stamp(g, o, name):
    if o.stamps:
        names = o.slist.split(",")
        if name in names:
            i = names.index(name)
            g(f"{'s_memtime' if o.cyc else 's_memrealtime'} {s(S_STAMP + 2 * i, 2)}")


def prologue(g, o):
    stamp(g, o, "start")
    g("s_cmp_ge_u32 s2, 256")
    g("s_cbranch_scc1 L_k1_end")
    g(f"s_load_dwordx8 {s(S_PTR, 8)}, s[0:1], 0")
    g(f"s_load_dwordx2 {s(S_PTR + 8, 2)}, s[0:1], 32")
    g(f"s_load_dwordx2 {s(S_PTR + 10, 2)}, s[0:1], 56")
    g("v_lshrrev_b32 v1, 6, v0")
    g("v_and_b32 v0, 63, v0")
    g(f"v_readfirstlane_b32 {s(S_W)}, v1")
    if o.codepf:
        g(f"s_getpc_b64 {s(S_SC, 2)}")
        g(f"s_lshr_b32 {s(S_T)}, s2, 3")
        g(f"s_and_b32 {s(S_T)}, {s(S_T)}, 15")
        g(f"s_lshl_b32 {s(S_T)}, {s(S_T)}, 2")
        g(f"s_add_u32 {s(S_T)}, {s(S_T)}, {s(S_W)}")
        g(f"v_lshl_add_u32 v2, v0, 6, {s(S_T)}")
        g(f"v_lshlrev_b32 v2, 7, v2")
        g(f"v_min_u32 v2, L_k1_end-attn_kernel-256, v2")
        g("s_mov_b64 exec, 0xff")
        g(f"global_load_dword {v(V_RI)}, v2, {s(S_SC, 2)}")
        g("s_mov_b64 exec, -1")
    g(f"s_lshr_b32 {s(S_T)}, s2, 3")
    g(f"s_and_b32 {s(S_R)}, {s(S_T)}, 1")
    g(f"s_lshr_b32 {s(S_B)}, {s(S_T)}, 1")
    if o.hmap < 2:
        g(f"s_and_b32 {s(S_B)}, {s(S_B)}, 7")
        g(f"s_lshr_b32 {s(S_T2)}, {s(S_T)}, 4")
        g(f"s_and_b32 {s(S_H)}, s2, 7")
        if o.hmap == 0:
            g(f"s_lshl_b32 {s(S_T3)}, {s(S_T2)}, 3")
            g(f"s_add_u32 {s(S_H)}, {s(S_H)}, {s(S_T3)}")
        else:
            g(f"s_lshl_b32 {s(S_H)}, {s(S_H)}, 1")
            g(f"s_add_u32 {s(S_H)}, {s(S_H)}, {s(S_T2)}")
        g(f"s_and_b32 {s(S_SH)}, {s(S_T)}, 15")
        xm = 3
    else:
        g(f"s_and_b32 {s(S_B)}, {s(S_B)}, 3")
        g(f"s_and_b32 {s(S_T2)}, s2, 4")
        g(f"s_add_u32 {s(S_B)}, {s(S_B)}, {s(S_T2)}")
        g(f"s_lshr_b32 {s(S_T2)}, {s(S_T)}, 3")
        g(f"s_and_b32 {s(S_H)}, s2, 3")
        g(f"s_lshl_b32 {s(S_H)}, {s(S_H)}, 2")
        g(f"s_add_u32 {s(S_H)}, {s(S_H)}, {s(S_T2)}")
        g(f"s_and_b32 {s(S_SH)}, {s(S_T)}, 7")
        xm = 2
    if o.rot:
        g(f"s_mul_i32 {s(S_T2)}, {s(S_T2)}, {xm}")
        g(f"s_add_u32 {s(S_T)}, {s(S_SH)}, {s(S_T2)}")
        g(f"s_mul_i32 {s(S_T2)}, {s(S_T)}, 37")
        g(f"s_lshr_b32 {s(S_T2)}, {s(S_T2)}, 8")
        g(f"s_mul_i32 {s(S_T2)}, {s(S_T2)}, 7")
        g(f"s_sub_u32 {s(S_T)}, {s(S_T)}, {s(S_T2)}")
    else:
        g(f"s_mov_b32 {s(S_T)}, 0")
    for it in range(7):
        g(f"s_lshl_b32 {s(S_XO + it)}, {s(S_T)}, 7")
        g(f"s_lshl_b32 {s(S_WQO + 2 * it)}, {s(S_T)}, 19")
        g(f"s_add_u32 {s(S_WQO + 2 * it + 1)}, {s(S_WQO + 2 * it)}, 0x40000")
        if it < 6:
            g(f"s_add_u32 {s(S_T)}, {s(S_T)}, 1")
            g(f"s_cmp_eq_u32 {s(S_T)}, 7")
            g(f"s_cselect_b32 {s(S_T)}, 0, {s(S_T)}")
    g(f"s_lshl_b32 {s(S_T)}, {s(S_W)}, 14")
    for i in range(4):
        g(f"s_add_u32 {s(S_RING + i)}, {s(S_T)}, {LDS_RING + 4096 * i}")
    g(f"s_lshl_b32 {s(S_XM)}, {s(S_W)}, 11")
    g(f"s_lshl_b32 {s(S_XM3)}, {s(S_W)}, 9")
    g(f"s_add_u32 {s(S_XM3)}, {s(S_XM3)}, 8192")
    q, pos, t0, t1, t2 = V_TMP, V_TMP + 1, V_TMP + 2, V_TMP + 3, V_TMP + 4
    g(f"v_lshrrev_b32 {v(q)}, 3, v0")
    g(f"v_and_b32 {v(pos)}, 7, v0")
    g(f"v_and_b32 {v(t0)}, 6, {v(q)}")
    g(f"v_xor_b32 {v(t0)}, {v(t0)}, {v(pos)}")
    g(f"v_lshlrev_b32 {v(t0)}, 4, {v(t0)}")
    g(f"v_and_b32 {v(t1)}, 4, {v(q)}")
    g(f"v_add_u32 {v(t1)}, {v(t1)}, {v(q)}")
    g(f"v_lshl_add_u32 {v(V_DWQ)}, {v(t1)}, 13, {v(t0)}")
    for j, kb in enumerate([0, 16, 4, 20]):
        if j: g(f"v_add_u32 {v(V_DWQ + j)}, {kb * 8192 - 1024 * j}, {v(V_DWQ)}")
    g(f"v_lshl_add_u32 {v(V_DV)}, {v(q)}, 9, {v(t0)}")
    g(f"v_mul_u32_u24 {v(t1)}, 896, {v(q)}")
    g(f"v_add_u32 {v(V_DWO)}, {v(t1)}, {v(t0)}")
    g(f"v_lshrrev_b32 {v(t0)}, 1, {v(q)}")
    g(f"v_xor_b32 {v(t0)}, {v(t0)}, {v(pos)}")
    g(f"v_lshlrev_b32 {v(t0)}, 4, {v(t0)}")
    g(f"v_xor_b32 {v(t2)}, 64, {v(t0)}")
    g(f"s_mul_i32 {s(S_T)}, {s(S_W)}, {16 * 896}")
    g(f"v_add3_u32 {v(V_DX)}, {v(t1)}, {v(t0)}, {s(S_T)}")
    g(f"s_add_u32 {s(S_T)}, {s(S_T)}, {8 * 896 - 1024}")
    g(f"v_add3_u32 {v(V_DX + 1)}, {v(t1)}, {v(t2)}, {s(S_T)}")
    g(f"s_lshl_b32 {s(S_T)}, {s(S_W)}, 5")
    g(f"v_xor_b32 {v(V_DX + 2)}, {s(S_T)}, {v(t0)}")
    g(f"s_mul_i32 {s(S_T)}, {s(S_W)}, {4 * 896}")
    g(f"s_add_u32 {s(S_T)}, {s(S_T)}, {64 * 896}")
    g(f"v_add3_u32 {v(V_DX + 2)}, {v(t1)}, {v(V_DX + 2)}, {s(S_T)}")
    g(f"v_lshl_add_u32 {v(t0)}, {v(q)}, 9, {v(t0)}")
    g(f"v_lshl_add_u32 {v(t2)}, {v(q)}, 9, {v(t2)}")
    g(f"v_add_u32 {v(V_DK)}, 2048, {v(t0)}")
    g(f"v_add_u32 {v(V_DK + 1)}, {4096 - 1024 + 2048}, {v(t2)}")
    g(f"v_add_u32 {v(V_DK + 2)}, {128 - 2048 + 2048}, {v(t0)}")
    g(f"v_add_u32 {v(V_DK + 3)}, {4096 + 128 - 3072 + 2048}, {v(t2)}")
    g("s_waitcnt lgkmcnt(0)")
    def srd(dst, ptr, off, total, bias=0):
        if bias:
            g(f"s_sub_u32 {s(ptr)}, {s(ptr)}, {bias}")
            g(f"s_subb_u32 {s(ptr + 1)}, {s(ptr + 1)}, 0")
        g(f"s_add_u32 {s(dst)}, {s(ptr)}, {s(off)}")
        g(f"s_addc_u32 {s(dst + 1)}, {s(ptr + 1)}, 0")
        g(f"s_sub_u32 {s(dst + 2)}, {total + bias}, {s(off)}")
        g(f"s_mov_b32 {s(dst + 3)}, 0x20000")
    g(f"s_mul_i32 {s(S_T)}, {s(S_B)}, 144")
    g(f"s_mul_i32 {s(S_T2)}, {s(S_R)}, 80")
    g(f"s_add_u32 {s(S_T)}, {s(S_T)}, {s(S_T2)}")
    g(f"s_mul_i32 {s(S_T)}, {s(S_T)}, 896")
    srd(SRD_X, S_PTR, S_T, 8 * 144 * 896)
    g(f"s_lshl_b32 {s(S_T)}, {s(S_H)}, 9")
    g(f"s_lshl_b32 {s(S_T2)}, {s(S_W)}, 7")
    g(f"s_add_u32 {s(S_T)}, {s(S_T)}, {s(S_T2)}")
    srd(SRD_WQ, S_PTR + 6, S_T, 448 * 8192)
    g(f"s_lshl_b32 {s(S_T3)}, {s(S_B)}, 4")
    g(f"s_add_u32 {s(S_T3)}, {s(S_T3)}, {s(S_H)}")
    g(f"s_lshl_b32 {s(S_T)}, {s(S_T3)}, 18")
    g(f"s_add_u32 {s(S_T2)}, {s(S_T)}, {s(S_T2)}")
    srd(SRD_V, S_PTR + 4, S_T2, 1 << 25)
    g(f"s_lshl_b32 {s(S_T2)}, {s(S_W)}, 16")
    g(f"s_add_u32 {s(S_T)}, {s(S_T)}, {s(S_T2)}")
    srd(SRD_K, S_PTR + 2, S_T, 1 << 25, 2048)
    g(f"s_lshl_b32 {s(S_T)}, {s(S_H)}, 3")
    g(f"s_add_u32 {s(S_T)}, {s(S_T)}, {s(S_W)}")
    g(f"s_mul_i32 {s(S_T)}, {s(S_T)}, {32 * 896}")
    srd(SRD_WO, S_PTR + 8, S_T, 4096 * 896)
    g(f"s_mul_i32 {s(S_T)}, {s(S_T3)}, {SLAB}")
    srd(SRD_P, S_PTR + 10, S_T, WS)


def late_setup(g, NT, obase):
    t0, t1, t2, gg, row = V_TMP, V_TMP + 1, V_TMP + 2, V_TMP + 3, V_TMP + 4
    for j in range(1, 4):
        g(f"v_add_u32 {v(V_DV + j)}, {(4096 - 1024) * j}, {v(V_DV)}")
        g(f"v_add_u32 {v(V_DWO + j)}, {(8 * 896 - 1024) * j}, {v(V_DWO)}")
    g(f"v_lshrrev_b32 {v(gg)}, 4, v0")
    g(f"v_and_b32 {v(row)}, 15, v0")
    g(f"v_lshrrev_b32 {v(t0)}, 2, v0")
    g(f"v_and_b32 {v(t1)}, 6, {v(t0)}")
    g(f"v_bfe_u32 {v(t2)}, v0, 1, 1")
    g(f"v_or_b32 {v(t1)}, {v(t1)}, {v(t2)}")
    g(f"v_lshlrev_b32 {v(t1)}, 4, {v(t1)}")
    g(f"v_lshl_add_u32 {v(t1)}, {v(t0)}, 7, {v(t1)}")
    g(f"v_and_b32 {v(t2)}, 1, v0")
    g(f"v_lshl_add_u32 {v(t1)}, {v(t2)}, 3, {v(t1)}")
    for t in range(4):
        g(f"v_xor_b32 {v(t2)}, {32 * t}, {v(t1)}")
        g(f"v_add_u32 {v(V_T + t)}, {s(S_RING)}, {v(t2)}")
    g(f"s_lshl_b32 {s(S_T)}, {s(S_W)}, 5")
    g(f"v_xor_b32 {v(t2)}, {s(S_T)}, {v(t1)}")
    g(f"v_add_u32 {v(V_WO)}, {LDS_RING}, {v(t2)}")
    g(f"v_lshrrev_b32 {v(t0)}, 1, {v(row)}")
    g(f"v_xor_b32 {v(t0)}, {v(t0)}, {v(gg)}")
    g(f"v_lshlrev_b32 {v(t0)}, 4, {v(t0)}")
    g(f"v_lshl_add_u32 {v(V_NX)}, {v(row)}, 7, {v(t0)}")
    g(f"v_xor_b32 {v(V_NX + 1)}, 64, {v(V_NX)}")
    g(f"v_add_u32 {v(V_NR)}, {s(S_RING)}, {v(V_NX)}")
    g(f"v_add_u32 {v(V_NR + 1)}, {s(S_RING)}, {v(V_NX + 1)}")
    g(f"v_lshlrev_b32 {v(V_F)}, 4, v0")
    g(f"v_add_u32 {v(V_F + 1)}, {HALF}, {v(V_F)}")
    g(f"v_lshlrev_b32 {v(V_L8)}, 3, v0")
    g(f"v_lshrrev_b32 {v(t0)}, 1, {v(gg)}")
    g(f"v_lshl_add_u32 {v(t0)}, {v(t0)}, 4, {v(row)}")
    g(f"v_lshlrev_b32 {v(t0)}, 4, {v(t0)}")
    g(f"v_and_b32 {v(t1)}, 1, {v(gg)}")
    g(f"v_lshl_add_u32 {v(t0)}, {v(t1)}, 3, {v(t0)}")
    g(f"s_mul_i32 {s(S_T)}, {s(S_W)}, {2 * NT * 1024}")
    g(f"v_add_u32 {v(V_QW)}, {s(S_T)}, {v(t0)}")
    g(f"v_add_u32 {v(V_OW)}, {s(S_T)}, {v(V_F + (1 if obase else 0))}")
    g(f"s_mul_i32 {s(S_T)}, {s(S_W)}, {NT * 1024}")
    g(f"v_add_u32 {v(V_PW)}, {s(S_T)}, {v(V_F)}")
    g(f"v_add_u32 {v(V_PW + 1)}, {s(S_T)}, {v(V_F + 1)}")
    g(f"v_lshlrev_b32 {v(t0)}, 4, {v(row)}")
    g(f"v_add_u32 {v(V_LR)}, {LDS_L}, {v(t0)}")
    g(f"s_lshl_b32 {s(S_T)}, {s(S_W)}, 2")
    g(f"v_add_u32 {v(V_LW)}, {s(S_T)}, {v(V_LR)}")
    for i in range(4):
        g(f"v_mov_b32 {v(V_ONE + i)}, 0x3f803f80")
    sc = f32(math.log2(math.e) / 16.0)
    g(f"s_mov_b32 {s(S_SC)}, {sc}")
    g(f"s_mov_b32 {s(S_SC + 1)}, {sc}")
    g(f"s_mov_b32 {s(S_FLAG)}, 0")


class F:
    def __init__(self, fn, cost=1, at=0):
        self.fn, self.cost, self.at = fn, cost, at


def mfma(d, A, B, first):
    return f"v_mfma_f32_16x16x32_bf16 {d}, {A}, {B}, {'0' if first else d}"


def run_step(g, mf, qa, qb, drain_b=False):
    n = len(mf)
    for i, m in enumerate(mf):
        g(m)
        budget = 2
        sal = 1
        took_a = 0
        while True:
            if qa and qa[0].at <= i and qa[0].cost == 0 and (sal > 0 or budget > 0):
                if sal > 0: sal -= 1
                else: budget -= 1
                qa.pop(0).fn()
                continue
            sal = 0
            b_ready = qb and qb[0].at <= i
            if qa and qa[0].at <= i and budget >= qa[0].cost and (took_a == 0 or not b_ready):
                f = qa.pop(0); budget -= f.cost; took_a += 1; f.fn()
                continue
            if b_ready and (budget >= qb[0].cost or (qb[0].cost > 2 and budget == 2)):
                f = qb.pop(0); budget -= f.cost; f.fn()
                if f.cost > 2: budget = 2
                continue
            break
    while qa:
        qa.pop(0).fn()
    for f in qb:
        f.at = 0
    if drain_b:
        while qb:
            qb.pop(0).fn()


def body(g, o, NT, tag):
    r = 0 if NT == 5 else 1
    ktiles = list(range(8))
    def pgroup(pi):
        return (1 - (pi >> 1), pi & 1)
    obase = 0
    pv = []
    for half in (0, 1):
        for idx in (0, 1):
            pi = [p for p in range(4) if pgroup(p) == (half, idx)][0]
            for w2 in range(4):
                pv.append((half, idx * 4 + w2, 128 * w2 + 16 * ktiles[2 * pi]))

    blocks = [("wq", n) for n in range(14)] + [("k", n) for n in range(16)] + \
             [("v", n) for n in range(16)] + [("wo", n) for n in range(14)]
    NB = len(blocks)
    btok = [None] * NB

    def dma_fillers(n, at=0):
        if n >= NB: return []
        ty, i = blocks[n]
        fl = []
        def S(txt): fl.append(F(lambda: g(txt), 0, at))
        def D(txt, last=False):
            def fn():
                t = g(txt)
                if last: btok[n] = t
            fl.append(F(fn, 1, at))
        if ty == "wq":
            e = i & 1
            its = [i >> 1] if e == 0 else []
            if o.xup:
                its = {0: [0], 2: [1, 2, 3, 4, 5, 6]}.get(i, [])
            for it in its:
                S(f"s_add_u32 m0, {s(S_XM)}, {it * NT * 2048}")
                D(f"buffer_load_dwordx4 {v(V_DX)}, {s(SRD_X, 4)}, {s(S_XO + it)} offen {o.xflag} lds")
                D(f"buffer_load_dwordx4 {v(V_DX + 1)}, {s(SRD_X, 4)}, {s(S_XO + it)} offen offset:1024 {o.xflag} lds")
                if NT == 5:
                    S(f"s_add_u32 m0, {s(S_XM3)}, {it * NT * 2048}")
                    def third(it=it):
                        g("s_mov_b32 exec_hi, 0")
                        g(f"buffer_load_dwordx4 {v(V_DX + 2)}, {s(SRD_X, 4)}, {s(S_XO + it)} offen {o.xflag} lds")
                        g("s_mov_b32 exec_hi, -1")
                    fl.append(F(third, 2, at))
            vo, srd, so, flag = V_DWQ, SRD_WQ, s(S_WQO + i), o.wqflag
        else:
            if ty == "k":
                off = ktiles[i >> 1] * 8192 + (i & 1) * 256
                vo, srd, flag = V_DK, SRD_K, o.kflag
            elif ty == "v":
                off = pv[i][2] * 512
                vo, srd, flag = V_DV, SRD_V, o.vflag
            else:
                off = (i & 1) * 128 * 896 + (i >> 1) * 128
                vo, srd, flag = V_DWO, SRD_WO, o.woflag
            S(f"s_mov_b32 {s(S_SO)}, {off}")
            so = s(S_SO)
        S(f"s_mov_b32 m0, {s(S_RING + (n & 3))}")
        for j in range(4):
            D(f"buffer_load_dwordx4 {v(vo + j)}, {s(srd, 4)}, {so} offen offset:{1024 * j} {flag} lds", j == 3)
        return fl

    def a_reads(n, at=0):
        ty, i = blocks[n]
        A = V_A + 16 * (n & 1)
        so = (n & 3) * 4096
        fl = []
        def R(txt): fl.append(F(lambda: g(txt), 1, at))
        for t in range(4):
            if ty == "k":
                R(f"ds_read_b128 {v(A + 4 * t, 4)}, {v(V_NR + (t & 1))} offset:{so + (t >> 1) * 2048}")
            else:
                ad = v(V_WO) if ty == "wo" else v(V_T + t)
                of = so + (t * 16384 if ty == "wo" else 0)
                R(f"ds_read_b64_tr_b16 {v(A + 4 * t, 2)}, {ad} offset:{of}")
                R(f"ds_read_b64_tr_b16 {v(A + 4 * t + 2, 2)}, {ad} offset:{of + 2048}")
        return fl

    xbump = [0]
    def b_reads(n, at=0):
        ty, i = blocks[n]
        B = V_B + 20 * (n & 1)
        fl = []
        def R(txt): fl.append(F(lambda: g(txt), 1, at))
        if ty == "wq":
            it, e = i >> 1, i & 1
            if it == 4 and e == 0:
                xbump[0] = 32768
                R(f"v_add_u32 {v(V_NX)}, 32768, {v(V_NX)}")
                R(f"v_add_u32 {v(V_NX + 1)}, 32768, {v(V_NX + 1)}")
            for rt in range(NT):
                R(f"ds_read_b128 {v(B + 4 * rt, 4)}, {v(V_NX + e)} offset:{(it * NT + rt) * 2048 - xbump[0]}")
        elif ty == "v":
            half, idx, _ = pv[i]
            for rt in range(NT):
                R(f"ds_read_b128 {v(B + 4 * rt, 4)}, {v(V_F + half)} offset:{(idx * NT + rt) * 1024}")
        return fl

    def wait_block(n, bar, at):
        fl = [F(lambda: g.wait(btok[n]), 0, at)]
        if bar: fl.append(F(lambda: g("s_barrier"), 0, at))
        return fl

    def run(fl):
        for f in fl: f.fn()

    acc = lambda t, rt: V_ACC + 4 * (t * NT + rt)

    stamp(g, o, "pro")
    for n in range(4):
        run(dma_fillers(n))
    stamp(g, o, "iss")
    late_setup(g, NT, obase)
    run(wait_block(0, True, 0))
    stamp(g, o, "first")
    run(b_reads(0)); run(a_reads(0))

    qb = []
    for n in range(14):
        A = V_A + 16 * (n & 1); B = V_B + 20 * (n & 1)
        g.wait(g.last("lg"))
        stamp(g, o, f"s{n}")
        mf = [mfma(v(acc(t, rt), 4), v(A + 4 * t, 4), v(B + 4 * rt, 4), n == 0) for rt in range(NT) for t in range(4)]
        wat = 4 if NT == 5 else 2
        qa = dma_fillers(n + 4) + wait_block(n + 1, (n in (1, 11)) if o.xup else (n < 13 and (n & 1) == 1), wat) + b_reads(n + 1, wat) + a_reads(n + 1, wat)
        if n == 13:
            for rt in range(NT):
                for t in range(4):
                    c = acc(t, rt); pk = V_PK + 2 * ((rt * 4 + t) % 8)
                    at = rt * 4 + t + 4
                    for h2 in range(2):
                        qb.append(F(lambda c=c, h2=h2: g(f"v_pk_mul_f32 {v(c + 2 * h2, 2)}, {v(c + 2 * h2, 2)}, {s(S_SC, 2)}"), 1, at))
                    for h2 in range(2):
                        qb.append(F(lambda c=c, h2=h2, pk=pk: g(f"v_cvt_pk_bf16_f32 {v(pk + h2)}, {v(c + 2 * h2)}, {v(c + 2 * h2 + 1)}"), 1, at))
                    qb.append(F(lambda t=t, rt=rt, pk=pk: g(f"ds_write_b64 {v(V_QW)}, {v(pk, 2)} offset:{((t >> 1) * NT + rt) * 1024 + (t & 1) * 512}"), 1, at))
        run_step(g, mf, qa, qb, drain_b=(n == 13))
    g.wait(g.last("lg"))
    g("s_barrier")
    stamp(g, o, "q")

    BF = lambda ks, rt: a(4 * (ks * NT + rt), 4)
    sacc = lambda tile, rt: V_ACC + 20 * (tile & 1) + 4 * rt
    lacc = lambda rt: V_ACC + 40 + 4 * rt
    pk = lambda rt: V_ACC + 60 + 4 * rt

    def frag_reads(base):
        return [F(lambda ks=ks, rt=rt: g(f"ds_read_b128 {BF(ks, rt)}, {v(V_F + (1 if base else 0))} offset:{(ks * NT + rt) * 1024}"), 1, 0)
                for ks in range(8) for rt in range(NT)]

    def softmax_fillers(tile):
        fl = []
        odd = tile & 1
        pi = tile >> 1
        half, idx = pgroup(pi)
        for rt in range(NT):
            c = sacc(tile, rt)
            for i in range(4):
                fl.append(F(lambda c=c, i=i: g(f"v_exp_f32 {v(c + i)}, {v(c + i)}"), 2, 2))
            for h2 in range(2):
                fl.append(F(lambda c=c, h2=h2, rt=rt: g(f"v_cvt_pk_bf16_f32 {v(pk(rt) + 2 * odd + h2)}, {v(c + 2 * h2)}, {v(c + 2 * h2 + 1)}"), 1, 2))
            if odd:
                fl.append(F(lambda rt=rt: g(f"ds_write_b128 {v(V_PW + half)}, {v(pk(rt), 4)} offset:{(idx * 4 * NT + rt) * 1024}"), 1, 2))
        if odd:
            for rt in range(NT):
                fl.append(F(lambda rt=rt: g(mfma(v(lacc(rt), 4), v(V_ONE, 4), v(pk(rt), 4), pi == 0)), 3, 2))
        return fl

    def tile_major(n0, nsteps, fr, accf, epi, coop, midbar):
        qb = []
        LOOK = 10
        run(fr[:LOOK]); fr = fr[LOOK:]
        for m in range(nsteps):
            n = n0 + m
            tile, hb = m >> 1, m & 1
            A = V_A + 16 * (n & 1)
            if m >= 2:
                g.wait(atok[0])
            stamp(g, o, f"s{n}")
            mf = [mfma(v(accf(tile, rt), 4), v(A + 4 * kk, 4), BF(4 * hb + kk, rt), hb == 0 and kk == 0)
                  for kk in range(4) for rt in range(NT)]
            nxt = []
            if n + 1 < NB:
                last_of_phase = (m == nsteps - 1)
                if coop:
                    nxt = wait_block(n + 1, True, 3) + dma_fillers(n + 4, 3) + a_reads(n + 1, 3)
                else:
                    nxt = dma_fillers(n + 4) + wait_block(n + 1, False, 6) + a_reads(n + 1, 6)
                def mark(): atok[0] = g.last("lg")
                nxt.append(F(mark, 0, 0))
            if m < 2:
                k = 4 * NT if m == 0 else len(fr)
                mine, fr = fr[:k], fr[k:]
                if coop and m == 0:
                    nxt.insert(0, F(lambda t=atok[0]: g.wait(t), 0, 3))
                if coop and m == 1:
                    nxt.insert(0, F(lambda t=atok[0]: g.wait(t), 0, 3))
                if not coop:
                    nxt.insert(0, F(lambda t=atok[0]: g.wait(t), 0, 0))
                run_step(g, mf, mine, nxt, drain_b=True)
            else:
                if m == midbar:
                    nxt.insert(0, F(lambda: g("s_barrier"), 0, 0))
                if hb == 0:
                    assert not qb, len(qb)
                    qb = epi(tile - 1)
                run_step(g, mf, nxt, qb, drain_b=(hb == 1))
        run(epi(nsteps // 2 - 1))

    atok = [g.last("lg")]
    tile_major(14, 16, frag_reads(0), sacc, softmax_fillers, False, 8)

    def write_l():
        for rt in range(NT):
            g(f"ds_write_b32 {v(V_LW)}, {v(lacc(rt))} offset:{rt * 256}")
    write_l()
    g.wait(g.last("lg"))
    g("s_barrier")
    stamp(g, o, "p")

    g.label(f"L_pv_{tag}")
    for rt in range(NT):
        g(f"ds_read_b128 {v(V_PK + 4 * rt, 4)}, {v(V_LR)} offset:{rt * 256}")
    run(b_reads(30))
    for rt in range(NT):
        p = V_PK + 4 * rt
        g(f"v_add_f32 {v(p)}, {v(p)}, {v(p + 1)}")
        g(f"v_add_f32 {v(p + 2)}, {v(p + 2)}, {v(p + 3)}")
        g(f"v_add_f32 {v(V_LS + rt)}, {v(p)}, {v(p + 2)}")
        g(f"v_rcp_f32 {v(V_RI + rt)}, {v(V_LS + rt)}")
    g(f"v_max_f32 {v(V_TMP)}, {v(V_LS)}, {v(V_RI)}")
    for rt in range(1, NT):
        g(f"v_max3_f32 {v(V_TMP)}, {v(V_TMP)}, {v(V_LS + rt)}, {v(V_RI + rt)}")
    g(f"v_cmp_lt_f32 vcc, {f32(2.0 ** 60)}, {v(V_TMP)}")
    g.nop(2)
    g(f"s_cbranch_vccz L_pvgo_{tag}")
    g(f"s_cmp_eq_u32 {s(S_FLAG)}, 0")
    g(f"s_cbranch_scc1 L_slow_{tag}")
    g.label(f"L_pvgo_{tag}")
    qb = []
    for m in range(16):
        n = 30 + m
        A = V_A + 16 * (n & 1); B = V_B + 20 * (n & 1)
        g.wait(g.last("lg"))
        stamp(g, o, f"s{n}")
        mf = [mfma(v(acc(t, rt), 4), v(A + 4 * t, 4), v(B + 4 * rt, 4), m == 0) for rt in range(NT) for t in range(4)]
        wat = 4 if NT == 5 else 2
        qa = []
        if m == 9: qa.append(F(lambda: g("s_barrier"), 0, 0))
        if m == o.wopf:
            def pf():
                sh = 3 if o.hmap < 2 else 2
                nl = 224 >> sh
                g(f"s_and_b32 {s(S_T2)}, {s(S_SH)}, {(1 << sh) - 1}")
                g(f"s_mul_i32 {s(S_T2)}, {s(S_T2)}, {nl * 128}")
                g(f"s_lshr_b32 {s(S_T)}, {s(S_SH)}, {sh}")
                g(f"s_mul_i32 {s(S_T)}, {s(S_T)}, {128 * 896}")
                g(f"s_add_u32 {s(S_T)}, {s(S_T)}, {s(S_T2)}")
                g(f"v_lshlrev_b32 {v(V_TMP)}, 7, v0")
                if nl <= 32: g(f"s_mov_b64 exec, {hex((1 << nl) - 1)}")
                else: g(f"s_mov_b32 exec_hi, {hex((1 << (nl - 32)) - 1)}")
                g(f"buffer_load_dword {v(V_TMP + 1)}, {v(V_TMP)}, {s(SRD_WO, 4)}, {s(S_T)} offen {o.pfflag}")
                g("s_mov_b64 exec, -1")
            qa.append(F(pf, 2, 0))
        qa += dma_fillers(n + 4)
        if m < 15:
            qa += b_reads(n + 1, 0) + wait_block(n + 1, False, wat) + a_reads(n + 1, wat)
        else:
            for rt in range(NT):
                for p in range(2):
                    pkr = V_PK + 4 * ((rt * 2 + p) % 4)
                    at = rt * 4 + 2 * p + 5
                    for t in (2 * p, 2 * p + 1):
                        c = acc(t, rt)
                        for i in range(4):
                            qb.append(F(lambda c=c, i=i, rt=rt: g(f"v_mul_f32 {v(c + i)}, {v(c + i)}, {v(V_RI + rt)}"), 1, at))
                        for h2 in range(2):
                            qb.append(F(lambda c=c, h2=h2, t=t, pkr=pkr: g(f"v_cvt_pk_bf16_f32 {v(pkr + 2 * (t & 1) + h2)}, {v(c + 2 * h2)}, {v(c + 2 * h2 + 1)}"), 1, at))
                    qb.append(F(lambda p=p, rt=rt, pkr=pkr: g(f"ds_write_b128 {v(V_OW)}, {v(pkr, 4)} offset:{(p * NT + rt) * 1024}"), 1, at))
        run_step(g, mf, qa, qb, drain_b=(m == 15))
    g.wait(btok[46], g.last("lg"))
    g("s_barrier")
    stamp(g, o, "o")

    def out_fillers(st):
        fl = []
        base = V_ACC + 40 + 12 * (st & 1)
        for rt in range(NT):
            c = sacc(st, rt)
            for h2 in range(2):
                fl.append(F(lambda c=c, h2=h2, rt=rt: g(f"v_cvt_pk_bf16_f32 {v(base + 2 * rt + h2)}, {v(c + 2 * h2)}, {v(c + 2 * h2 + 1)}"), 1, 2))
            if rt in (1, 3):
                pidx = 2 * r + (rt >> 1)
                def stx4(rt=rt, pidx=pidx):
                    g(f"s_add_u32 {s(S_ST)}, {s(S_T2)}, {(pidx * 28 + 4 * st) * 1024}")
                    g(f"buffer_store_dwordx4 {v(base + 2 * (rt - 1), 4)}, {v(V_F)}, {s(SRD_P, 4)}, {s(S_ST)} offen {o.stflag}")
                if not o.nost: fl.append(F(stx4, 2, 2))
            if rt == 4:
                def stx2():
                    g(f"s_add_u32 {s(S_ST)}, {s(S_T3)}, {112 * 1024 + 4 * st * 512}")
                    g(f"buffer_store_dwordx2 {v(base + 8, 2)}, {v(V_L8)}, {s(SRD_P, 4)}, {s(S_ST)} offen {o.stflag}")
                if not o.nost: fl.append(F(stx2, 2, 2))
        return fl
    g(f"s_lshl_b32 {s(S_T2)}, {s(S_W)}, 10")
    g(f"s_lshl_b32 {s(S_T3)}, {s(S_W)}, 9")
    run(a_reads(46))
    atok[0] = g.last("lg")
    tile_major(46, 14, frag_reads(obase), sacc, out_fillers, True, -1)
    stamp(g, o, "out")
    if o.stamps:
        g.wait_all(force=True)
        stamp(g, o, "drain")
        g("s_waitcnt lgkmcnt(0)")
        g(f"s_mov_b32 {s(SRD_P)}, {s(S_PTR + 10)}")
        g(f"s_mov_b32 {s(SRD_P + 1)}, {s(S_PTR + 11)}")
        g(f"s_mov_b32 {s(SRD_P + 2)}, {WS}")
        g(f"s_lshl_b32 {s(S_T)}, s2, 2")
        g(f"s_add_u32 {s(S_T)}, {s(S_T)}, {s(S_W)}")
        g(f"s_lshl_b32 {s(S_T)}, {s(S_T)}, 7")
        g(f"s_add_u32 {s(S_T)}, {s(S_T)}, {STAMP_OFF}")
        g(f"v_mov_b32 v1, 0")
        for i in range(len(o.slist.split(','))):
            g(f"v_mov_b32 v2, {s(S_STAMP + 2 * i)}")
            g(f"v_mov_b32 v3, {s(S_STAMP + 2 * i + 1)}")
            g(f"buffer_store_dwordx2 v[2:3], v1, {s(SRD_P, 4)}, {s(S_T)} offen offset:{8 * i}")
            g.nop(2)
    g("s_endpgm")

    g.label(f"L_slow_{tag}")
    g.reset_state()
    KF = 208
    VK = V_TMP + 1
    VM = V_LS
    VP = V_TMP + 2
    g.wait_all(force=True)
    g.nop(8)
    g("s_barrier")
    g(f"s_mov_b32 {s(S_FLAG)}, 1")
    g(f"v_and_b32 {v(VK)}, 15, v0")
    g(f"v_lshlrev_b32 {v(VK)}, 9, {v(VK)}")
    g(f"v_lshrrev_b32 {v(V_TMP)}, 4, v0")
    g(f"v_lshl_add_u32 {v(VK)}, {v(V_TMP)}, 4, {v(VK)}")
    g(f"v_add_u32 {v(VK)}, 2048, {v(VK)}")
    for rt in range(NT):
        g(f"v_mov_b32 {v(VM + rt)}, 0xff800000")

    def slow_tile(par):
        for ks in range(8):
            g(f"buffer_load_dwordx4 {v(KF + 4 * ks, 4)}, {v(VK)}, {s(SRD_K, 4)}, {s(S_SO)} offen offset:{64 * ks}")
        for ks in range(8):
            for rt in range(NT):
                g(mfma(v(sacc(par, rt), 4), v(KF + 4 * ks, 4), BF(ks, rt), ks == 0))
    g(f"s_mov_b32 {s(S_SO)}, 0")
    g.label(f"L_slow1_{tag}")
    slow_tile(0)
    for rt in range(NT):
        c = sacc(0, rt)
        g(f"v_max3_f32 {v(VM + rt)}, {v(VM + rt)}, {v(c)}, {v(c + 1)}")
        g(f"v_max3_f32 {v(VM + rt)}, {v(VM + rt)}, {v(c + 2)}, {v(c + 3)}")
    g(f"s_add_u32 {s(S_SO)}, {s(S_SO)}, 8192")
    g(f"s_cmp_lt_u32 {s(S_SO)}, 65536")
    g(f"s_cbranch_scc1 L_slow1_{tag}")
    for rt in range(NT):
        m = VM + rt
        for op in ("v_permlane32_swap_b32", "v_permlane16_swap_b32"):
            g(f"v_mov_b32 {v(V_TMP)}, {v(m)}")
            g(f"{op} {v(V_TMP)}, {v(m)}")
            g.nop(2)
            g(f"v_max_f32 {v(m)}, {v(m)}, {v(V_TMP)}")
        g(f"ds_write_b32 {v(V_LW)}, {v(m)} offset:{2048 + rt * 256}")
    g.wait_all(force=True)
    g("s_barrier")
    for rt in range(NT):
        p = V_B + 4 * rt
        g(f"ds_read_b128 {v(p, 4)}, {v(V_LR)} offset:{2048 + rt * 256}")
        g(f"v_max3_f32 {v(p)}, {v(p)}, {v(p + 1)}, {v(p + 2)}")
        g(f"v_max_f32 {v(VM + rt)}, {v(p)}, {v(p + 3)}")
    for rt in range(NT):
        for i in range(4):
            g(f"v_mov_b32 {v(lacc(rt) + i)}, 0")
    g(f"s_mov_b32 {s(S_CNT)}, 0")
    g.label(f"L_slow2_{tag}")
    for pi in range(4):
        half, idx = pgroup(pi)
        g(f"s_cmp_eq_u32 {s(S_CNT)}, {pi}")
        g(f"s_cselect_b32 {s(S_SO)}, {ktiles[2 * pi] * 8192}, {s(S_SO)}")
        g(f"s_cselect_b32 {s(S_T)}, {half * HALF + idx * 4 * NT * 1024}, {s(S_T)}")
    g(f"v_add_u32 {v(VP)}, {s(S_T)}, {v(V_PW)}")
    for par in range(2):
        slow_tile(par)
        if par == 0:
            g(f"s_add_u32 {s(S_SO)}, {s(S_SO)}, 8192")
        for rt in range(NT):
            c = sacc(par, rt)
            for i in range(4):
                g(f"v_sub_f32 {v(c + i)}, {v(c + i)}, {v(VM + rt)}")
            for i in range(4):
                g(f"v_exp_f32 {v(c + i)}, {v(c + i)}")
            for h2 in range(2):
                g(f"v_cvt_pk_bf16_f32 {v(pk(rt) + 2 * par + h2)}, {v(c + 2 * h2)}, {v(c + 2 * h2 + 1)}")
    for rt in range(NT):
        g(f"ds_write_b128 {v(VP)}, {v(pk(rt), 4)} offset:{rt * 1024}")
        g(mfma(v(lacc(rt), 4), v(V_ONE, 4), v(pk(rt), 4), False))
    g(f"s_add_u32 {s(S_CNT)}, {s(S_CNT)}, 1")
    g(f"s_cmp_lt_u32 {s(S_CNT)}, 4")
    g.nop(8)
    g(f"s_cbranch_scc1 L_slow2_{tag}")
    write_l()
    g.wait_all(force=True)
    g.nop(8)
    g("s_barrier")
    g(f"s_branch L_pv_{tag}")


def reduce_kernel(g, o):
    if o.stamps: g("s_memrealtime s[40:41]")
    g("s_cmp_ge_u32 s2, 252")
    g("s_cbranch_scc1 L_k2_end")
    g("s_load_dwordx2 s[8:9], s[0:1], 40")
    g("s_load_dwordx2 s[4:5], s[0:1], 56")
    g("v_lshrrev_b32 v1, 6, v0")
    g("v_and_b32 v0, 63, v0")
    g("v_readfirstlane_b32 s3, v1")
    g("v_lshlrev_b32 v1, 4, v0")
    g("s_cmp_ge_u32 s2, 224")
    g("s_cbranch_scc1 L_k2_odd")
    g("s_mul_i32 s12, s2, 9363")
    g("s_lshr_b32 s12, s12, 16")
    g("s_mul_i32 s13, s12, 7")
    g("s_sub_u32 s13, s2, s13")
    g("s_lshr_b32 s14, s12, 2")
    g("s_and_b32 s15, s12, 3")
    g("s_lshl_b32 s13, s13, 2")
    g("s_add_u32 s13, s13, s3")
    g("s_mul_i32 s16, s15, 28")
    g("s_add_u32 s16, s16, s13")
    g("s_lshl_b32 s16, s16, 10")
    g("s_lshl_b32 s17, s15, 5")
    g("s_lshr_b32 s18, s15, 1")
    g("s_lshl_b32 s18, s18, 4")
    g("s_add_u32 s17, s17, s18")
    g("s_mul_i32 s18, s14, 144")
    g("s_add_u32 s17, s17, s18")
    g("s_mul_i32 s17, s17, 896")
    g("s_lshl_b32 s18, s13, 5")
    g("s_add_u32 s17, s17, s18")
    g("v_and_b32 v2, 15, v0")
    g("v_mul_u32_u24 v2, 896, v2")
    g("v_lshrrev_b32 v3, 4, v0")
    g("v_lshl_add_u32 v2, v3, 3, v2")
    g("v_add_u32 v2, s17, v2")
    g(f"v_add_u32 v3, {16 * 896}, v2")
    g("s_branch L_k2_go")
    g.label("L_k2_odd")
    g("s_sub_u32 s12, s2, 224")
    g("s_lshl_b32 s12, s12, 2")
    g("s_add_u32 s12, s12, s3")
    g("s_mul_i32 s14, s12, 4682")
    g("s_lshr_b32 s14, s14, 16")
    g("s_mul_i32 s13, s14, 14")
    g("s_sub_u32 s13, s12, s13")
    g("s_add_u32 s16, s13, 112")
    g("s_lshl_b32 s16, s16, 10")
    g("s_mul_i32 s17, s14, 144")
    g("s_add_u32 s17, s17, 64")
    g("s_mul_i32 s17, s17, 896")
    g("s_lshl_b32 s18, s13, 6")
    g("s_add_u32 s17, s17, s18")
    g("v_and_b32 v2, 7, v0")
    g(f"v_mul_u32_u24 v2, {2 * 896}, v2")
    g("v_lshrrev_b32 v3, 3, v0")
    g("v_lshl_add_u32 v2, v3, 3, v2")
    g("v_add_u32 v2, s17, v2")
    g("v_add_u32 v3, 896, v2")
    g.label("L_k2_go")
    g.reset_state()
    g(f"s_mul_i32 s14, s14, {16 * SLAB}")
    g("s_add_u32 s16, s16, s14")
    g("s_waitcnt lgkmcnt(0)")
    g(f"s_mov_b32 s6, {WS}")
    g("s_mov_b32 s7, 0x20000")
    g(f"s_mov_b32 s10, {8 * 144 * 896}")
    g("s_mov_b32 s11, 0x20000")
    for h in range(16):
        g(f"buffer_load_dwordx4 {v(16 + 4 * h, 4)}, v1, s[4:7], s16 offen {o.rdflag}")
        if h < 15: g(f"s_add_u32 s16, s16, {SLAB}")
    g("s_mov_b32 s20, 0xffff0000")
    for h in range(16):
        for i in range(4):
            src = 16 + 4 * h + i
            if h == 0:
                g(f"v_lshlrev_b32 {v(4 + 2 * i)}, 16, {v(src)}")
                g(f"v_and_b32 {v(5 + 2 * i)}, s20, {v(src)}")
            else:
                g(f"v_lshlrev_b32 v12, 16, {v(src)}")
                g(f"v_and_b32 v13, s20, {v(src)}")
                g(f"v_pk_add_f32 {v(4 + 2 * i, 2)}, {v(4 + 2 * i, 2)}, v[12:13]")
    for i in range(4):
        g(f"v_cvt_pk_bf16_f32 {v(12 + i)}, {v(4 + 2 * i)}, {v(5 + 2 * i)}")
    g("buffer_store_dwordx2 v[12:13], v2, s[8:11], 0 offen")
    g("buffer_store_dwordx2 v[14:15], v3, s[8:11], 0 offen")
    if o.stamps:
        g("s_memrealtime s[42:43]")
        g.wait_all(force=True)
        g("s_memrealtime s[44:45]")
        g("s_waitcnt lgkmcnt(0)")
        g("s_lshl_b32 s12, s2, 2")
        g("s_add_u32 s12, s12, s3")
        g("s_lshl_b32 s12, s12, 7")
        g(f"s_add_u32 s12, s12, {STAMP_OFF}")
        g("v_mov_b32 v1, 0")
        for i in range(3):
            g(f"v_mov_b32 v2, s{40 + 2 * i}")
            g(f"v_mov_b32 v3, s{41 + 2 * i}")
            g(f"buffer_store_dwordx2 v[2:3], v1, s[4:7], s12 offen offset:{8 * (13 + i)}")
            g.nop(2)
    g.label("L_k2_end")
    g("s_endpgm")


HEAD = """; Fused MHA block: out = softmax((x wq) K^T / 16) V wo   (B=8, Sq=144, D=448, H=16, Sk=512, Dh=256, bf16)
; kernarg: x@0 k_cache@8 v_cache@16 wq@24 wo@32 out@40 debug@48 ws@56
; attn_kernel : one workgroup per (batch, head, row half); q-projection, attention and that head's share of the
"""


def build(o):
    g = Gen()
    g.raw(HEAD.rstrip())
    g.raw(f"; @launch kernel=attn_kernel grid=(256,1,1) block=(256,1,1) lds={LDS_BYTES}")
    g.raw("; @launch kernel=sum_kernel grid=(252,1,1) block=(256,1,1) lds=0")
    g.raw('.amdgcn_target "amdgcn-amd-amdhsa--gfx950"\n.text\n.globl attn_kernel\n.p2align 8\n.type attn_kernel,@function')
    g.label("attn_kernel")
    prologue(g, o)
    g(f"s_cmp_eq_u32 {s(S_R)}, 1")
    g("s_cbranch_scc1 L_light")
    g.reset_state(); g.nop(4)
    body(g, o, 5, "h")
    g.raw(".p2align 6")
    g.label("L_light")
    g.reset_state(); g.nop(4)
    body(g, o, 4, "l")
    g.label("L_k1_end")
    g("s_endpgm")
    g.raw(kd("attn_kernel", 512, 256))
    g.raw(".globl sum_kernel\n.p2align 8\n.type sum_kernel,@function")
    g.label("sum_kernel")
    g.reset_state()
    reduce_kernel(g, o)
    g.raw(kd("sum_kernel", 80, 80, 48))
    return g


if __name__ == "__main__":
    o = Opt()
    out = sys.argv[1]
    for kv in sys.argv[2:]:
        k, _, val = kv.partition("=")
        cur = getattr(o, k)
        if isinstance(cur, bool): val = val in ("1", "true", "True")
        elif isinstance(cur, int): val = int(val)
        else: val = val.replace("+", " ")
        setattr(o, k, val)
    g = build(o)
    open(out, "w").write(g.text())
    print(out, "instrs", g.ninstr, "nops", g.nnops, file=sys.stderr)
```

```python
import sys, struct, math
from asmgen import Gen, v, a, s, kd, Tok

WS = 268435456
STAMP_OFF = WS - (4 << 20)
SLAB = 129 * 1024
FLAG_OFF = 17 << 20
EP_OFF = FLAG_OFF + (1 << 20)
LDS_L = 81920
LDS_RING = 86016
LDS_BYTES = LDS_RING + 4 * 16384
HALF = 40960

def f32(x): return "0x%08x" % struct.unpack("<I", struct.pack("<f", x))[0]

S_W = 3
SRD_X, SRD_K, SRD_V, SRD_WQ, SRD_WO, SRD_P = 4, 8, 12, 16, 20, 24
S_RING = 28
S_B, S_H, S_R = 32, 33, 34
S_T = 35
S_PTR = 36
S_SO = 36
S_XM = 37
S_XM3 = 38
S_FLAG = 39
S_FW = 40
S_FR = 41
S_RD = 42
S_XH = 43
S_PF = 44
SRD_WS, SRD_OUT = SRD_X, SRD_WQ
S_XO = 52
S_WQO = 59
S_SH = 73
S_SC = 74
S_T2 = 76
S_T3 = 77
S_ST = 78
S_CNT = 79
S_STAMP = 80

V_T = 1
V_WO = 5
V_NR = 6
V_NX = 8
V_F = 10
V_QW = 12
V_LW = 13
V_LR = 14
V_PW = 15
V_OW = 17
V_DWQ = 18
V_DK = 22
V_DV = 26
V_DWO = 30
V_DX = 34
V_L8 = 37
V_TMP = 38
V_ONE = 44
V_ACC = 48
V_A = 128
V_B = 160
V_PK = 200
V_RI = 240
V_LS = 245
V_EP = 250
V_OA = 251
V_PO = 253
V_L4 = 254


class Opt:
    stamps = False
    kflag = ""
    vflag = ""
    wqflag = ""
    woflag = ""
    xflag = ""
    stflag = "sc1"
    rdflag = "sc1"
    rot = True
    codepf = True
    wopf = 8
    xup = False
    nost = False
    init = 1
    bk2 = False
    hold = 0
    fuse = True
    alt = False
    fgrp = "3,6"
    dyn = False
    x_nobar = False
    x_nodma = False
    x_noepi = False
    fw = "swap"
    warmf = True
    exp = 0
    sleep = 0
    dot = True
    pollf = "sc1"
    xpf = True
    avrot = 1
    lateno = True
    cyc = False
    slist = "start,first,q,p,o,out,drain"
    pfflag = ""
    hmap = 1


def stamp(g, o, name):
    if o.stamps:
        names = o.slist.split(",")
        if name in names:
            i = names.index(name)
            g(f"{'s_memtime' if o.cyc else 's_memrealtime'} {s(S_STAMP + 2 * i, 2)}")


def prologue(g, o):
    stamp(g, o, "start")
    g("s_cmp_ge_u32 s2, 256")
    g("s_cbranch_scc1 L_k1_end")
    g(f"s_load_dwordx16 {s(S_PTR, 16)}, s[0:1], 0")
    g("v_lshrrev_b32 v1, 6, v0")
    g("v_and_b32 v0, 63, v0")
    g(f"v_readfirstlane_b32 {s(S_W)}, v1")
    if o.codepf:
        g(f"s_getpc_b64 {s(S_SC, 2)}")
        g(f"s_lshr_b32 {s(S_T)}, s2, 3")
        g(f"s_and_b32 {s(S_T)}, {s(S_T)}, 15")
        g(f"s_lshl_b32 {s(S_T)}, {s(S_T)}, 2")
        g(f"s_add_u32 {s(S_T)}, {s(S_T)}, {s(S_W)}")
        g(f"v_lshl_add_u32 v2, v0, 6, {s(S_T)}")
        g(f"v_lshlrev_b32 v2, 7, v2")
        g(f"v_min_u32 v2, L_k1_end-{KN}-256, v2")
        g("s_mov_b64 exec, 0xff")
        g(f"global_load_dword {v(V_RI)}, v2, {s(S_SC, 2)}")
        g("s_mov_b64 exec, -1")
    g(f"s_lshr_b32 {s(S_T)}, s2, 3")
    g(f"s_and_b32 {s(S_R)}, {s(S_T)}, 1")
    g(f"s_lshr_b32 {s(S_B)}, {s(S_T)}, 1")
    if o.hmap < 2:
        g(f"s_and_b32 {s(S_B)}, {s(S_B)}, 7")
        g(f"s_lshr_b32 {s(S_T2)}, {s(S_T)}, 4")
        g(f"s_and_b32 {s(S_H)}, s2, 7")
        if o.hmap == 0:
            g(f"s_lshl_b32 {s(S_T3)}, {s(S_T2)}, 3")
            g(f"s_add_u32 {s(S_H)}, {s(S_H)}, {s(S_T3)}")
        else:
            g(f"s_lshl_b32 {s(S_H)}, {s(S_H)}, 1")
            g(f"s_add_u32 {s(S_H)}, {s(S_H)}, {s(S_T2)}")
        g(f"s_and_b32 {s(S_SH)}, {s(S_T)}, 15")
        xm = 3
    else:
        g(f"s_and_b32 {s(S_B)}, {s(S_B)}, 3")
        g(f"s_and_b32 {s(S_T2)}, s2, 4")
        g(f"s_add_u32 {s(S_B)}, {s(S_B)}, {s(S_T2)}")
        g(f"s_lshr_b32 {s(S_T2)}, {s(S_T)}, 3")
        g(f"s_and_b32 {s(S_H)}, s2, 3")
        g(f"s_lshl_b32 {s(S_H)}, {s(S_H)}, 2")
        g(f"s_add_u32 {s(S_H)}, {s(S_H)}, {s(S_T2)}")
        g(f"s_and_b32 {s(S_SH)}, {s(S_T)}, 7")
        xm = 2
    if o.rot:
        g(f"s_mul_i32 {s(S_T2)}, {s(S_T2)}, {xm}")
        g(f"s_add_u32 {s(S_T)}, {s(S_SH)}, {s(S_T2)}")
        g(f"s_mul_i32 {s(S_T2)}, {s(S_T)}, 37")
        g(f"s_lshr_b32 {s(S_T2)}, {s(S_T2)}, 8")
        g(f"s_mul_i32 {s(S_T2)}, {s(S_T2)}, 7")
        g(f"s_sub_u32 {s(S_T)}, {s(S_T)}, {s(S_T2)}")
    else:
        g(f"s_mov_b32 {s(S_T)}, 0")
    for it in range(7):
        g(f"s_lshl_b32 {s(S_XO + it)}, {s(S_T)}, 7")
        g(f"s_lshl_b32 {s(S_WQO + 2 * it)}, {s(S_T)}, 19")
        g(f"s_add_u32 {s(S_WQO + 2 * it + 1)}, {s(S_WQO + 2 * it)}, 0x40000")
        if it < 6:
            g(f"s_add_u32 {s(S_T)}, {s(S_T)}, 1")
            g(f"s_cmp_eq_u32 {s(S_T)}, 7")
            g(f"s_cselect_b32 {s(S_T)}, 0, {s(S_T)}")
    g(f"s_lshl_b32 {s(S_T)}, {s(S_W)}, 14")
    for i in range(4):
        g(f"s_add_u32 {s(S_RING + i)}, {s(S_T)}, {LDS_RING + 4096 * i}")
    q, pos, t0, t1, t2 = V_TMP, V_TMP + 1, V_TMP + 2, V_TMP + 3, V_TMP + 4
    g(f"v_lshrrev_b32 {v(q)}, 3, v0")
    g(f"v_and_b32 {v(pos)}, 7, v0")
    g(f"v_and_b32 {v(t0)}, 6, {v(q)}")
    g(f"v_xor_b32 {v(t0)}, {v(t0)}, {v(pos)}")
    g(f"v_lshlrev_b32 {v(t0)}, 4, {v(t0)}")
    g(f"v_and_b32 {v(t1)}, 4, {v(q)}")
    g(f"v_add_u32 {v(t1)}, {v(t1)}, {v(q)}")
    g(f"v_lshl_add_u32 {v(V_DWQ)}, {v(t1)}, 13, {v(t0)}")
    for j, kb in enumerate([0, 16, 4, 20]):
        if j: g(f"v_add_u32 {v(V_DWQ + j)}, {kb * 8192 - 1024 * j}, {v(V_DWQ)}")
    g(f"v_lshl_add_u32 {v(V_DV)}, {v(q)}, 9, {v(t0)}")
    g(f"v_mul_u32_u24 {v(t1)}, 896, {v(q)}")
    g(f"v_add_u32 {v(V_DWO)}, {v(t1)}, {v(t0)}")
    g(f"v_lshrrev_b32 {v(t0)}, 1, {v(q)}")
    g(f"v_xor_b32 {v(t0)}, {v(t0)}, {v(pos)}")
    g(f"v_lshlrev_b32 {v(t0)}, 4, {v(t0)}")
    g(f"v_xor_b32 {v(t2)}, 64, {v(t0)}")
    g(f"s_mul_i32 {s(S_T)}, {s(S_W)}, {16 * 896}")
    g(f"v_add3_u32 {v(V_DX)}, {v(t1)}, {v(t0)}, {s(S_T)}")
    g(f"s_add_u32 {s(S_T)}, {s(S_T)}, {8 * 896 - 1024}")
    g(f"v_add3_u32 {v(V_DX + 1)}, {v(t1)}, {v(t2)}, {s(S_T)}")
    g(f"s_lshl_b32 {s(S_T)}, {s(S_W)}, 5")
    g(f"v_xor_b32 {v(V_DX + 2)}, {s(S_T)}, {v(t0)}")
    g(f"s_mul_i32 {s(S_T)}, {s(S_W)}, {4 * 896}")
    g(f"s_add_u32 {s(S_T)}, {s(S_T)}, {64 * 896}")
    g(f"v_add3_u32 {v(V_DX + 2)}, {v(t1)}, {v(V_DX + 2)}, {s(S_T)}")
    g(f"v_lshl_add_u32 {v(t0)}, {v(q)}, 9, {v(t0)}")
    g(f"v_lshl_add_u32 {v(t2)}, {v(q)}, 9, {v(t2)}")
    g(f"v_add_u32 {v(V_DK)}, 2048, {v(t0)}")
    g(f"v_add_u32 {v(V_DK + 1)}, {4096 - 1024 + 2048}, {v(t2)}")
    g(f"v_add_u32 {v(V_DK + 2)}, {128 - 2048 + 2048}, {v(t0)}")
    g(f"v_add_u32 {v(V_DK + 3)}, {4096 + 128 - 3072 + 2048}, {v(t2)}")
    g("s_waitcnt lgkmcnt(0)")
    def srd(dst, ptr, off, total, bias=0):
        if bias:
            g(f"s_sub_u32 {s(ptr)}, {s(ptr)}, {bias}")
            g(f"s_subb_u32 {s(ptr + 1)}, {s(ptr + 1)}, 0")
        g(f"s_add_u32 {s(dst)}, {s(ptr)}, {s(off)}")
        g(f"s_addc_u32 {s(dst + 1)}, {s(ptr + 1)}, 0")
        g(f"s_sub_u32 {s(dst + 2)}, {total + bias}, {s(off)}")
        g(f"s_mov_b32 {s(dst + 3)}, 0x20000")
    g(f"s_mul_i32 {s(S_T)}, {s(S_B)}, 144")
    g(f"s_mul_i32 {s(S_T2)}, {s(S_R)}, 80")
    g(f"s_add_u32 {s(S_T)}, {s(S_T)}, {s(S_T2)}")
    g(f"s_mul_i32 {s(S_T)}, {s(S_T)}, 896")
    srd(SRD_X, S_PTR, S_T, 8 * 144 * 896)
    g(f"s_lshl_b32 {s(S_T)}, {s(S_H)}, 9")
    g(f"s_lshl_b32 {s(S_T2)}, {s(S_W)}, 7")
    g(f"s_add_u32 {s(S_T)}, {s(S_T)}, {s(S_T2)}")
    srd(SRD_WQ, S_PTR + 6, S_T, 448 * 8192)
    g(f"s_lshl_b32 {s(S_T3)}, {s(S_B)}, 4")
    g(f"s_add_u32 {s(S_T3)}, {s(S_T3)}, {s(S_H)}")
    g(f"s_lshl_b32 {s(S_T)}, {s(S_T3)}, 18")
    g(f"s_add_u32 {s(S_T2)}, {s(S_T)}, {s(S_T2)}")
    srd(SRD_V, S_PTR + 4, S_T2, 1 << 25)
    g(f"s_lshl_b32 {s(S_T2)}, {s(S_W)}, 16")
    g(f"s_add_u32 {s(S_T)}, {s(S_T)}, {s(S_T2)}")
    srd(SRD_K, S_PTR + 2, S_T, 1 << 25, 2048)
    g(f"s_lshl_b32 {s(S_T)}, {s(S_H)}, 3")
    g(f"s_add_u32 {s(S_T)}, {s(S_T)}, {s(S_W)}")
    g(f"s_mul_i32 {s(S_T)}, {s(S_T)}, {32 * 896}")
    srd(SRD_WO, S_PTR + 8, S_T, 4096 * 896)
    g(f"s_mul_i32 {s(S_T)}, {s(S_T3)}, {SLAB}")
    srd(SRD_P, S_PTR + 14, S_T, WS)
    g(f"s_lshl_b32 {s(S_XM)}, {s(S_W)}, 11")
    g(f"s_lshl_b32 {s(S_XM3)}, {s(S_W)}, 9")
    g(f"s_add_u32 {s(S_XM3)}, {s(S_XM3)}, 8192")


def late_setup(g, NT, obase):
    t0, t1, t2, gg, row = V_TMP, V_TMP + 1, V_TMP + 2, V_TMP + 3, V_TMP + 4
    for j in range(1, 4):
        g(f"v_add_u32 {v(V_DV + j)}, {(4096 - 1024) * j}, {v(V_DV)}")
        g(f"v_add_u32 {v(V_DWO + j)}, {(8 * 896 - 1024) * j}, {v(V_DWO)}")
    g(f"v_lshrrev_b32 {v(gg)}, 4, v0")
    g(f"v_and_b32 {v(row)}, 15, v0")
    g(f"v_lshrrev_b32 {v(t0)}, 2, v0")
    g(f"v_and_b32 {v(t1)}, 6, {v(t0)}")
    g(f"v_bfe_u32 {v(t2)}, v0, 1, 1")
    g(f"v_or_b32 {v(t1)}, {v(t1)}, {v(t2)}")
    g(f"v_lshlrev_b32 {v(t1)}, 4, {v(t1)}")
    g(f"v_lshl_add_u32 {v(t1)}, {v(t0)}, 7, {v(t1)}")
    g(f"v_and_b32 {v(t2)}, 1, v0")
    g(f"v_lshl_add_u32 {v(t1)}, {v(t2)}, 3, {v(t1)}")
    for t in range(4):
        g(f"v_xor_b32 {v(t2)}, {32 * t}, {v(t1)}")
        g(f"v_add_u32 {v(V_T + t)}, {s(S_RING)}, {v(t2)}")
    g(f"s_lshl_b32 {s(S_T)}, {s(S_W)}, 5")
    g(f"v_xor_b32 {v(t2)}, {s(S_T)}, {v(t1)}")
    g(f"v_add_u32 {v(V_WO)}, {LDS_RING}, {v(t2)}")
    g(f"v_lshrrev_b32 {v(t0)}, 1, {v(row)}")
    g(f"v_xor_b32 {v(t0)}, {v(t0)}, {v(gg)}")
    g(f"v_lshlrev_b32 {v(t0)}, 4, {v(t0)}")
    g(f"v_lshl_add_u32 {v(V_NX)}, {v(row)}, 7, {v(t0)}")
    g(f"v_xor_b32 {v(V_NX + 1)}, 64, {v(V_NX)}")
    g(f"v_add_u32 {v(V_NR)}, {s(S_RING)}, {v(V_NX)}")
    g(f"v_add_u32 {v(V_NR + 1)}, {s(S_RING)}, {v(V_NX + 1)}")
    g(f"v_lshlrev_b32 {v(V_F)}, 4, v0")
    g(f"v_add_u32 {v(V_F + 1)}, {HALF}, {v(V_F)}")
    g(f"v_lshlrev_b32 {v(V_L8)}, 3, v0")
    g(f"v_lshrrev_b32 {v(t0)}, 1, {v(gg)}")
    g(f"v_lshl_add_u32 {v(t0)}, {v(t0)}, 4, {v(row)}")
    g(f"v_lshlrev_b32 {v(t0)}, 4, {v(t0)}")
    g(f"v_and_b32 {v(t1)}, 1, {v(gg)}")
    g(f"v_lshl_add_u32 {v(t0)}, {v(t1)}, 3, {v(t0)}")
    g(f"s_mul_i32 {s(S_T)}, {s(S_W)}, {2 * NT * 1024}")
    g(f"v_add_u32 {v(V_QW)}, {s(S_T)}, {v(t0)}")
    g(f"v_add_u32 {v(V_OW)}, {s(S_T)}, {v(V_F + (1 if obase else 0))}")
    g(f"s_mul_i32 {s(S_T)}, {s(S_W)}, {NT * 1024}")
    g(f"v_add_u32 {v(V_PW)}, {s(S_T)}, {v(V_F)}")
    g(f"v_add_u32 {v(V_PW + 1)}, {s(S_T)}, {v(V_F + 1)}")
    g(f"v_lshlrev_b32 {v(t0)}, 4, {v(row)}")
    g(f"v_add_u32 {v(V_LR)}, {LDS_L}, {v(t0)}")
    g(f"s_lshl_b32 {s(S_T)}, {s(S_W)}, 2")
    g(f"v_add_u32 {v(V_LW)}, {s(S_T)}, {v(V_LR)}")
    for i in range(4):
        g(f"v_mov_b32 {v(V_ONE + i)}, 0x3f803f80")
    sc = f32(math.log2(math.e) / 16.0)
    g(f"s_mov_b32 {s(S_SC)}, {sc}")
    g(f"s_mov_b32 {s(S_SC + 1)}, {sc}")
    g(f"s_mov_b32 {s(S_FLAG)}, 0")


def task_tables(r):
    if r == 1:
        t = [(p, s_) for s_ in range(3) for p in range(4)] + [(4, 1), (2, 3), (3, 3), (4, 3)]
    else:
        t = [(0, 3), (1, 3)] + [(p, s_) for s_ in (4, 5, 6) for p in range(4)] + [(4, 5), (4, 6)]
    kt = sum(k << (4 * i) for i, (k, _) in enumerate(t))
    st_ = sum(x << (4 * i) for i, (_, x) in enumerate(t))
    return kt, st_


def fuse_setup(g, o, NT):
    r = 0 if NT == 5 else 1
    kt, stt = task_tables(r)
    ends = [int(x) for x in o.fgrp.split(",")]
    ft = sum(min(e for e in ends if e >= x) << (4 * x) for x in range(7))
    K, ST, T, T2 = S_XO, S_XO + 1, S_XO + 2, S_XO + 3
    P = S_XO + 4
    t0, t1 = V_TMP + 4, V_TMP + 5
    L = []
    L += [f"s_mov_b32 {s(SRD_WS)}, {s(S_PTR + 14)}", f"s_mov_b32 {s(SRD_WS + 1)}, {s(S_PTR + 15)}",
          f"s_mov_b32 {s(SRD_WS + 2)}, {WS}", f"s_mov_b32 {s(SRD_WS + 3)}, 0x20000",
          f"s_mov_b32 {s(SRD_OUT)}, {s(S_PTR + 10)}", f"s_mov_b32 {s(SRD_OUT + 1)}, {s(S_PTR + 11)}",
          f"s_mov_b32 {s(SRD_OUT + 2)}, {8 * 144 * 896}", f"s_mov_b32 {s(SRD_OUT + 3)}, 0x20000",
          f"v_mov_b32 {v(V_PO)}, 0",
          f"global_load_dword {v(V_EP)}, {v(V_PO)}, {s(S_PTR + 12, 2)} sc1",
          f"s_lshl_b32 {s(T)}, {s(S_H)}, 2",
          f"s_mov_b32 {s(P)}, {kt & 0xffffffff}", f"s_mov_b32 {s(P + 1)}, {kt >> 32}",
          f"s_lshr_b64 {s(P, 2)}, {s(P, 2)}, {s(T)}", f"s_and_b32 {s(K)}, {s(P)}, 15",
          f"s_mov_b32 {s(P)}, {stt & 0xffffffff}", f"s_mov_b32 {s(P + 1)}, {stt >> 32}",
          f"s_lshr_b64 {s(P, 2)}, {s(P, 2)}, {s(T)}", f"s_and_b32 {s(ST)}, {s(P)}, 15",
          f"s_lshl_b32 {s(T2)}, {s(S_B)}, 3", f"s_add_u32 {s(T2)}, {s(T2)}, {s(S_W)}", f"s_mul_i32 {s(T2)}, {s(T2)}, 896",
          f"s_add_u32 {s(S_FW)}, {s(T2)}, {FLAG_OFF + r * 4 * 896}", f"s_add_u32 {s(S_FW)}, {s(S_FW)}, {s(T)}",
          f"s_lshl_b32 {s(T)}, {s(ST)}, 2", f"s_lshr_b32 {s(P)}, {ft}, {s(T)}", f"s_and_b32 {s(P)}, {s(P)}, 15",
          f"s_bfe_u32 {s(T)}, {s(K)}, 0x10001", f"s_mul_i32 {s(T)}, {s(T)}, {4 * 7}", f"s_add_u32 {s(T)}, {s(T)}, {s(P)}",
          f"s_lshl_b32 {s(T)}, {s(T)}, 7", f"s_add_u32 {s(T)}, {s(T)}, {s(T2)}", f"s_add_u32 {s(S_FR)}, {s(T)}, {FLAG_OFF}",
          f"s_lshr_b32 {s(T)}, {s(K)}, 2", f"s_lshr_b32 {s(T)}, {s(ST)}, {s(T)}", f"s_lshl_b32 {s(T)}, {s(T)}, 2",
          f"s_mul_i32 {s(T2)}, {s(K)}, 28", f"s_add_u32 {s(T)}, {s(T)}, {s(T2)}", f"s_add_u32 {s(T)}, {s(T)}, {s(S_W)}",
          f"s_lshl_b32 {s(T)}, {s(T)}, 10", f"s_mul_i32 {s(T2)}, {s(S_B)}, {16 * SLAB}", f"s_add_u32 {s(S_RD)}, {s(T)}, {s(T2)}",
          f"s_lshl_b32 {s(T)}, {s(K)}, 3", f"s_mov_b32 {s(P)}, {0 | 32 << 8 | 80 << 16 | 112 << 24}", f"s_mov_b32 {s(P + 1)}, 64",
          f"s_lshr_b64 {s(P, 2)}, {s(P, 2)}, {s(T)}", f"s_and_b32 {s(T)}, {s(P)}, 255",
          f"s_mul_i32 {s(T2)}, {s(S_B)}, 144", f"s_add_u32 {s(T)}, {s(T)}, {s(T2)}", f"s_mul_i32 {s(T)}, {s(T)}, 896",
          f"s_lshr_b32 {s(T2)}, {s(K)}, 2", f"s_andn2_b32 {s(T2)}, {s(ST)}, {s(T2)}", f"s_lshl_b32 {s(T2)}, {s(T2)}, 2",
          f"s_add_u32 {s(T2)}, {s(T2)}, {s(S_W)}", f"s_lshl_b32 {s(T2)}, {s(T2)}, 5", f"s_add_u32 {s(T)}, {s(T)}, {s(T2)}",
          f"v_and_b32 {v(t0)}, 15, v0", f"v_mul_u32_u24 {v(t0)}, 896, {v(t0)}", f"v_lshrrev_b32 {v(t1)}, 4, v0",
          f"v_lshl_add_u32 {v(V_OA)}, {v(t1)}, 3, {v(t0)}",
          f"v_and_b32 {v(t0)}, 7, v0", f"v_mul_u32_u24 {v(t0)}, {2 * 896}, {v(t0)}", f"v_bfe_u32 {v(t1)}, v0, 3, 2",
          f"v_lshl_add_u32 {v(t0)}, {v(t1)}, 3, {v(t0)}", f"v_lshrrev_b32 {v(t1)}, 5, v0",
          f"v_lshl_add_u32 {v(t0)}, {v(t1)}, 7, {v(t0)}"]
    fl = [F(lambda t=t: g(t), 1, 0) for t in L]
    def sel():
        g(f"s_cmp_eq_u32 {s(K)}, 4")
        g(f"s_cselect_b64 vcc, -1, 0")
        g(f"s_cselect_b32 {s(T2)}, 896, {16 * 896}".replace(f", {16 * 896}", f", {s(P)}"))
    fl.append(F(lambda: g(f"s_mov_b32 {s(P)}, {16 * 896}"), 1, 0))
    fl.append(F(sel, 2, 0))
    L2 = [f"v_cndmask_b32 {v(V_OA)}, {v(V_OA)}, {v(t0)}, vcc",
          f"v_add_u32 {v(V_OA)}, {s(T)}, {v(V_OA)}", f"v_add_u32 {v(V_OA + 1)}, {s(T2)}, {v(V_OA)}",

          f"v_lshlrev_b32 {v(V_L4)}, 2, v0"]
    fl += [F(lambda t=t: g(t), 1, 0) for t in L2]
    if o.warmf:
        def warm():
            lab = f"L_nowarm_{NT}"
            g(f"s_cmp_lg_u32 {s(S_H)}, 0")
            g(f"s_cbranch_scc1 {lab}")
            g("s_mov_b64 exec, 1")
            for e in ends:
                g.raw(f"    buffer_atomic_or {v(V_PO)}, off, {s(SRD_WS, 4)}, {s(S_FW)} offset:{128 * e} sc1")
            g("s_mov_b64 exec, -1")
            g.label(lab)
        fl.append(F(warm, 2, 0))
    return fl


class F:
    def __init__(self, fn, cost=1, at=0):
        self.fn, self.cost, self.at = fn, cost, at


def mfma(d, A, B, first):
    return f"v_mfma_f32_16x16x32_bf16 {d}, {A}, {B}, {'0' if first else d}"


def run_step(g, mf, qa, qb, drain_b=False):
    n = len(mf)
    for i, m in enumerate(mf):
        g(m)
        budget = 2
        sal = 1
        took_a = 0
        while True:
            if qa and qa[0].at <= i and qa[0].cost == 0 and (sal > 0 or budget > 0):
                if sal > 0: sal -= 1
                else: budget -= 1
                qa.pop(0).fn()
                continue
            sal = 0
            b_ready = qb and qb[0].at <= i
            if qa and qa[0].at <= i and budget >= qa[0].cost and (took_a == 0 or not b_ready):
                f = qa.pop(0); budget -= f.cost; took_a += 1; f.fn()
                continue
            if b_ready and (budget >= qb[0].cost or (qb[0].cost > 2 and budget == 2)):
                f = qb.pop(0); budget -= f.cost; f.fn()
                if f.cost > 2: budget = 2
                continue
            break
    while qa:
        qa.pop(0).fn()
    for f in qb:
        f.at = 0
    if drain_b:
        while qb:
            qb.pop(0).fn()


def body(g, o, NT, tag):
    r = 0 if NT == 5 else 1
    hold = o.hold if NT == 4 else 0
    A_HOLD = 128
    ktiles = list(range(hold, 8)) + list(range(hold))
    if NT == 5 and o.bk2: ktiles = list(range(o.hold, 8)) + list(range(o.hold))
    def pgroup(pi):
        return (1 - (pi >> 1), pi & 1)
    if o.hold:
        porder = [0, 1, 2, 3] if NT == 5 else [(p - o.avrot) % 4 for p in range(4)]
    else:
        porder = [2, 3, 0, 1]
    pv = []
    for p in porder:
        pi = ktiles.index(2 * p) >> 1
        half, idx = pgroup(pi)
        for w2 in range(4):
            pv.append((half, idx * 4 + w2, 128 * w2 + 32 * p))
    alt = 1 if (o.alt and NT == 4) else 0
    pv = [pv[i ^ alt] for i in range(16)]
    ohalf = 1 - pv[15][0]
    obase = HALF * ohalf
    pvbar = max(i for i in range(16) if pv[i][0] == ohalf) + 1

    blocks = [("k", 2 * (8 - hold) + n) for n in range(2 * hold)] + [("wq", n) for n in range(14)] + \
             [("k", n) for n in range(16 - 2 * hold)] + [("v", n) for n in range(16)] + [("wo", n) for n in range(14)]
    NB = len(blocks)
    bidx = {b: n for n, b in enumerate(blocks)}
    btok = [None] * NB
    xup = o.xup or hold > 0
    st = {"dma": 0}

    def issue_upto(n, at=0):
        fl = []
        while st["dma"] <= min(n, NB - 1):
            fl += dma_fillers(st["dma"], at)
            st["dma"] += 1
        return fl

    def dma_fillers(n, at=0):
        if n >= NB: return []
        ty, i = blocks[n]
        fl = []
        def S(txt): fl.append(F(lambda: g(txt), 0, at))
        def D(txt, last=False):
            def fn():
                t = g(txt)
                if last: btok[n] = t
            fl.append(F(fn, 1, at))
        if ty == "wq":
            e = i & 1
            its = [i >> 1] if e == 0 else []
            if hold:
                its = list(range(7)) if i == 0 else []
            elif o.xup:
                its = {0: [0], 2: [1, 2, 3, 4, 5, 6]}.get(i, [])
            for it in its:
                S(f"s_add_u32 m0, {s(S_XM)}, {it * NT * 2048}")
                D(f"buffer_load_dwordx4 {v(V_DX)}, {s(SRD_X, 4)}, {s(S_XO + it)} offen {o.xflag} lds")
                D(f"buffer_load_dwordx4 {v(V_DX + 1)}, {s(SRD_X, 4)}, {s(S_XO + it)} offen offset:1024 {o.xflag} lds")
                if NT == 5:
                    S(f"s_add_u32 m0, {s(S_XM3)}, {it * NT * 2048}")
                    def third(it=it):
                        g("s_mov_b32 exec_hi, 0")
                        g(f"buffer_load_dwordx4 {v(V_DX + 2)}, {s(SRD_X, 4)}, {s(S_XO + it)} offen {o.xflag} lds")
                        g("s_mov_b32 exec_hi, -1")
                    fl.append(F(third, 2, at))
            vo, srd, so, flag = V_DWQ, SRD_WQ, s(S_WQO + i), o.wqflag
        else:
            if ty == "k":
                off = ktiles[i >> 1] * 8192 + ((i & 1) ^ alt) * 256
                vo, srd, flag = V_DK, SRD_K, o.kflag
            elif ty == "v":
                off = pv[i][2] * 512
                vo, srd, flag = V_DV, SRD_V, o.vflag
            else:
                off = (i & 1) * 128 * 896 + (i >> 1) * 128
                vo, srd, flag = V_DWO, SRD_WO, o.woflag
            S(f"s_mov_b32 {s(S_SO)}, {off}")
            so = s(S_SO)
        S(f"s_mov_b32 m0, {s(S_RING + (n & 3))}")
        for j in range(4):
            D(f"buffer_load_dwordx4 {v(vo + j)}, {s(srd, 4)}, {so} offen offset:{1024 * j} {flag} lds", j == 3)
        return fl

    def areg(n, t, k=4, o2=0):
        if n < 2 * hold: return a(A_HOLD + 16 * n + 4 * t + o2, k)
        return v(V_A + 16 * (n & 1) + 4 * t + o2, k)

    def a_reads(n, at=0):
        ty, i = blocks[n]
        so = (n & 3) * 4096
        fl = []
        def R(txt): fl.append(F(lambda: g(txt), 1, at))
        for t in range(4):
            if ty == "k":
                R(f"ds_read_b128 {areg(n, t)}, {v(V_NR + (t & 1))} offset:{so + (t >> 1) * 2048}")
            else:
                ad = v(V_WO) if ty == "wo" else v(V_T + t)
                of = so + (t * 16384 if ty == "wo" else 0)
                R(f"ds_read_b64_tr_b16 {areg(n, t, 2)}, {ad} offset:{of}")
                R(f"ds_read_b64_tr_b16 {areg(n, t, 2, 2)}, {ad} offset:{of + 2048}")
        return fl

    xbump = [0]
    def b_reads(n, at=0):
        ty, i = blocks[n]
        B = V_B + 20 * (n & 1)
        fl = []
        def R(txt): fl.append(F(lambda: g(txt), 1, at))
        if ty == "wq":
            it, e = i >> 1, i & 1
            if it == 4 and e == 0:
                xbump[0] = 32768
                R(f"v_add_u32 {v(V_NX)}, 32768, {v(V_NX)}")
                R(f"v_add_u32 {v(V_NX + 1)}, 32768, {v(V_NX + 1)}")
            for rt in range(NT):
                R(f"ds_read_b128 {v(B + 4 * rt, 4)}, {v(V_NX + e)} offset:{(it * NT + rt) * 2048 - xbump[0]}")
        elif ty == "v":
            half, idx, _ = pv[i]
            for rt in range(NT):
                R(f"ds_read_b128 {v(B + 4 * rt, 4)}, {v(V_F + half)} offset:{(idx * NT + rt) * 1024}")
        return fl

    def wait_block(n, bar, at):
        fl = [F(lambda: g.wait(btok[n]), 0, at)]
        if bar: fl.append(F(lambda: g("s_barrier"), 0, at))
        return fl

    def run(fl):
        for f in fl: f.fn()

    acc = lambda t, rt: V_ACC + 4 * (t * NT + rt)

    stamp(g, o, "pro")
    if hold and o.xpf:
        g(f"s_sub_u32 {s(S_PF)}, {s(SRD_X)}, {80 * 896}")
        g(f"s_subb_u32 {s(S_PF + 1)}, {s(SRD_X + 1)}, 0")
        g(f"s_and_b32 {s(S_T)}, {s(S_H)}, 1")
        g(f"s_lshl_b32 {s(S_T)}, {s(S_T)}, 2")
        g(f"s_add_u32 {s(S_T)}, {s(S_T)}, {s(S_W)}")
        g(f"s_mul_i32 {s(S_T)}, {s(S_T)}, {70 * 128}")
        g(f"v_lshl_add_u32 {v(V_RI + 1)}, v0, 8, {s(S_T)}")
        g("s_mov_b32 exec_hi, 7")
        g(f"global_load_dword {v(V_RI + 2)}, {v(V_RI + 1)}, {s(S_PF, 2)}")
        g(f"global_load_dword {v(V_RI + 3)}, {v(V_RI + 1)}, {s(S_PF, 2)} offset:128")
        g("s_mov_b32 exec_hi, -1")
        g.pending.clear()
    run(issue_upto(o.init))
    stamp(g, o, "iss")
    if o.fuse and NT == 4:
        g(f"s_lshl_b32 {s(S_T)}, s2, 2")
        g(f"s_add_u32 {s(S_T)}, {s(S_T)}, {s(S_W)}")
        g(f"s_cmp_lg_u32 {s(S_T)}, 32")
        g("s_cbranch_scc1 L_noepoch")
        g(f"s_add_u32 {s(S_PF)}, {s(S_PTR + 14)}, {EP_OFF}")
        g(f"s_addc_u32 {s(S_PF + 1)}, {s(S_PTR + 15)}, 0")
        g(f"s_load_dword {s(S_T)}, {s(S_PF, 2)}, 0")
        g.raw("    s_waitcnt lgkmcnt(0)")
        g(f"s_add_u32 {s(S_T)}, {s(S_T)}, 2")
        g(f"s_or_b32 {s(S_T)}, {s(S_T)}, 1")
        g(f"v_mov_b32 {v(V_EP)}, {s(S_T)}")
        g(f"v_mov_b32 {v(V_PO)}, 0")
        g("s_mov_b64 exec, 1")
        g.raw(f"    global_store_dword {v(V_PO)}, {v(V_EP)}, {s(S_PTR + 12, 2)} sc1")
        g.raw(f"    global_store_dword {v(V_PO)}, {v(V_EP)}, {s(S_PF, 2)} sc1")
        g("s_mov_b64 exec, -1")
        g.label("L_noepoch")
    late_setup(g, NT, obase)
    for n in range(2 * hold):
        run(wait_block(n, False, 0))
        run(a_reads(n))
        g.wait(g.last("lg"))
        run(issue_upto(n + 4))
    stamp(g, o, "held")
    n0 = 2 * hold
    run(wait_block(n0, True, 0))
    stamp(g, o, "first")
    run(b_reads(n0)); run(a_reads(n0))
    if not hold: run(issue_upto(2))

    qb = []
    for m in range(14):
        n = n0 + m
        B = V_B + 20 * (n & 1)
        g.wait(g.last("lg"))
        stamp(g, o, f"s{m}")
        mf = [mfma(v(acc(t, rt), 4), areg(n, t), v(B + 4 * rt, 4), m == 0) for rt in range(NT) for t in range(4)]
        wat = 4 if NT == 5 else 2
        if hold: bar = (m == 11)
        elif o.xup: bar = m in (1, 11)
        else: bar = m < 13 and (m & 1) == 1
        qa = issue_upto(n + 4) + wait_block(n + 1, bar, wat) + b_reads(n + 1, wat) + a_reads(n + 1, wat)
        if m == 13:
            for rt in range(NT):
                for t in range(4):
                    c = acc(t, rt); pk = V_PK + 2 * ((rt * 4 + t) % 8)
                    at = rt * 4 + t + 4
                    for h2 in range(2):
                        qb.append(F(lambda c=c, h2=h2: g(f"v_pk_mul_f32 {v(c + 2 * h2, 2)}, {v(c + 2 * h2, 2)}, {s(S_SC, 2)}"), 1, at))
                    for h2 in range(2):
                        qb.append(F(lambda c=c, h2=h2, pk=pk: g(f"v_cvt_pk_bf16_f32 {v(pk + h2)}, {v(c + 2 * h2)}, {v(c + 2 * h2 + 1)}"), 1, at))
                    qb.append(F(lambda t=t, rt=rt, pk=pk: g(f"ds_write_b64 {v(V_QW)}, {v(pk, 2)} offset:{((t >> 1) * NT + rt) * 1024 + (t & 1) * 512}"), 1, at))
        run_step(g, mf, qa, qb, drain_b=(m == 13))
    g.wait(g.last("lg"))
    g("s_barrier")
    stamp(g, o, "q")

    BF = lambda ks, rt: a(4 * (ks * NT + rt), 4)
    sacc = lambda tile, rt: V_ACC + 20 * (tile & 1) + 4 * rt
    lacc = lambda rt: V_ACC + 40 + 4 * rt
    pk = lambda rt: V_ACC + 60 + 4 * rt

    def frag_reads(base, x=0):
        return [F(lambda ks=ks ^ x, rt=rt: g(f"ds_read_b128 {BF(ks, rt)}, {v(V_F + (1 if base else 0))} offset:{(ks * NT + rt) * 1024}"), 1, 0)
                for ks in range(8) for rt in range(NT)]

    def softmax_fillers(tile):
        fl = []
        odd = tile & 1
        pi = tile >> 1
        half, idx = pgroup(pi)
        for rt in range(NT):
            c = sacc(tile, rt)
            for i in range(4):
                fl.append(F(lambda c=c, i=i: g(f"v_exp_f32 {v(c + i)}, {v(c + i)}"), 2, 2))
            for h2 in range(2):
                fl.append(F(lambda c=c, h2=h2, rt=rt: g(f"v_cvt_pk_bf16_f32 {v(pk(rt) + 2 * odd + h2)}, {v(c + 2 * h2)}, {v(c + 2 * h2 + 1)}"), 1, 2))
            if odd:
                fl.append(F(lambda rt=rt: g(f"ds_write_b128 {v(V_PW + half)}, {v(pk(rt), 4)} offset:{(idx * 4 * NT + rt) * 1024}"), 1, 2))
        if odd:
            for rt in range(NT):
                fl.append(F(lambda rt=rt: g(mfma(v(lacc(rt), 4), v(V_ONE, 4), v(pk(rt), 4), pi == 0)), 3, 2))
        return fl

    def tile_major(ty, nsteps, after, fr, accf, epi, coop, midbar, sbase):
        qb = []
        LOOK = 10
        run(fr[:LOOK]); fr = fr[LOOK:]
        for m in range(nsteps):
            n = bidx[(ty, m)]
            n1 = bidx[(ty, m + 1)] if m + 1 < nsteps else after
            ring_now = n >= 2 * hold
            ring_next = n1 is not None and n1 >= 2 * hold
            tile, hb = m >> 1, m & 1
            if m >= 2:
                g.wait(atok[0])
            stamp(g, o, f"s{sbase + m}")
            mf = [mfma(v(accf(tile, rt), 4), areg(n, kk), BF(4 * (hb ^ (alt if ty == 'k' else 0)) + kk, rt), hb == 0 and kk == 0)
                  for kk in range(4) for rt in range(NT)]
            nxt = []
            if coop:
                if ring_next:
                    nxt = wait_block(n1, not o.x_nobar, 3) + ([] if o.x_nodma else issue_upto(n + 4, 3)) + a_reads(n1, 3)
            else:
                if ring_now: nxt += issue_upto(n + 4)
                if ring_next: nxt += wait_block(n1, False, 6) + a_reads(n1, 6)
            def mark(): atok[0] = g.last("lg")
            if ring_next: nxt.append(F(mark, 0, 0))
            if m < 2:
                k = 4 * NT if m == 0 else len(fr)
                mine, fr = fr[:k], fr[k:]
                nxt.insert(0, F(lambda t=atok[0]: g.wait(t), 0, 3 if coop else 0))
                run_step(g, mf, mine, nxt, drain_b=True)
            else:
                if m == midbar:
                    nxt.insert(0, F(lambda: g("s_barrier"), 0, 0))
                if hb == 0:
                    assert not qb, len(qb)
                    qb = epi(tile - 1)
                run_step(g, mf, nxt, qb, drain_b=(hb == 1))
        run(epi(nsteps // 2 - 1))

    atok = [g.last("lg")]
    tile_major("k", 16, 30, frag_reads(0, 4 * alt), sacc, softmax_fillers, False, 8, 14)

    def write_l():
        for rt in range(NT):
            g(f"ds_write_b32 {v(V_LW)}, {v(lacc(rt))} offset:{rt * 256}")
    write_l()
    g.wait(g.last("lg"))
    g("s_barrier")
    stamp(g, o, "p")

    g.label(f"L_pv_{tag}")
    for rt in range(NT):
        g(f"ds_read_b128 {v(V_PK + 4 * rt, 4)}, {v(V_LR)} offset:{rt * 256}")
    run(b_reads(30))
    for rt in range(NT):
        p = V_PK + 4 * rt
        g(f"v_add_f32 {v(p)}, {v(p)}, {v(p + 1)}")
        g(f"v_add_f32 {v(p + 2)}, {v(p + 2)}, {v(p + 3)}")
        g(f"v_add_f32 {v(V_LS + rt)}, {v(p)}, {v(p + 2)}")
        g(f"v_rcp_f32 {v(V_RI + rt)}, {v(V_LS + rt)}")
    g(f"v_max_f32 {v(V_TMP)}, {v(V_LS)}, {v(V_RI)}")
    for rt in range(1, NT):
        g(f"v_max3_f32 {v(V_TMP)}, {v(V_TMP)}, {v(V_LS + rt)}, {v(V_RI + rt)}")
    g(f"v_cmp_lt_f32 vcc, {f32(2.0 ** 60)}, {v(V_TMP)}")
    g.nop(2)
    g(f"s_cbranch_vccz L_pvgo_{tag}")
    g(f"s_cmp_eq_u32 {s(S_FLAG)}, 0")
    g(f"s_cbranch_scc1 L_slow_{tag}")
    g.label(f"L_pvgo_{tag}")
    qb = []
    for m in range(16):
        n = 30 + m
        A = V_A + 16 * (n & 1); B = V_B + 20 * (n & 1)
        g.wait(g.last("lg"))
        stamp(g, o, f"s{n}")
        mf = [mfma(v(acc(t, rt), 4), v(A + 4 * t, 4), v(B + 4 * rt, 4), m == 0) for rt in range(NT) for t in range(4)]
        wat = 4 if NT == 5 else 2
        qa = []
        if m == pvbar: qa.append(F(lambda: g("s_barrier"), 0, 0))
        if o.fuse and m == 1:
            qb += fuse_setup(g, o, NT)
        if m == o.wopf:
            def pf():
                sh = 3 if o.hmap < 2 else 2
                nl = 224 >> sh
                g(f"s_and_b32 {s(S_T2)}, {s(S_SH)}, {(1 << sh) - 1}")
                g(f"s_mul_i32 {s(S_T2)}, {s(S_T2)}, {nl * 128}")
                g(f"s_lshr_b32 {s(S_T)}, {s(S_SH)}, {sh}")
                g(f"s_mul_i32 {s(S_T)}, {s(S_T)}, {128 * 896}")
                g(f"s_add_u32 {s(S_T)}, {s(S_T)}, {s(S_T2)}")
                g(f"v_lshlrev_b32 {v(V_TMP)}, 7, v0")
                if nl <= 32: g(f"s_mov_b64 exec, {hex((1 << nl) - 1)}")
                else: g(f"s_mov_b32 exec_hi, {hex((1 << (nl - 32)) - 1)}")
                g(f"buffer_load_dword {v(V_TMP + 1)}, {v(V_TMP)}, {s(SRD_WO, 4)}, {s(S_T)} offen {o.pfflag}")
                g("s_mov_b64 exec, -1")
            qa.append(F(pf, 2, 0))
        qa += issue_upto(n + 4)
        if m < 15:
            qa += b_reads(n + 1, 0) + wait_block(n + 1, False, wat) + a_reads(n + 1, wat)
        else:
            for rt in range(NT):
                for p in range(2):
                    pkr = V_PK + 4 * ((rt * 2 + p) % 4)
                    at = rt * 4 + 2 * p + 5
                    for t in (2 * p, 2 * p + 1):
                        c = acc(t, rt)
                        for i in range(4):
                            if not o.lateno: qb.append(F(lambda c=c, i=i, rt=rt: g(f"v_mul_f32 {v(c + i)}, {v(c + i)}, {v(V_RI + rt)}"), 1, at))
                        for h2 in range(2):
                            qb.append(F(lambda c=c, h2=h2, t=t, pkr=pkr: g(f"v_cvt_pk_bf16_f32 {v(pkr + 2 * (t & 1) + h2)}, {v(c + 2 * h2)}, {v(c + 2 * h2 + 1)}"), 1, at))
                    qb.append(F(lambda p=p, rt=rt, pkr=pkr: g(f"ds_write_b128 {v(V_OW)}, {v(pkr, 4)} offset:{(p * NT + rt) * 1024}"), 1, at))
        run_step(g, mf, qa, qb, drain_b=(m == 15))
    g.wait(btok[46], g.last("lg"))
    g("s_barrier")
    stamp(g, o, "o")

    def out_fillers(st):
        fl = []
        if o.x_noepi: return fl
        base = V_ACC + 40 + 12 * (st & 1)
        for rt in range(NT):
            c = sacc(st, rt)
            for i in range(4):
                if o.lateno: fl.append(F(lambda c=c, i=i, rt=rt: g(f"v_mul_f32 {v(c + i)}, {v(c + i)}, {v(V_RI + rt)}"), 1, 2))
            for h2 in range(2):
                fl.append(F(lambda c=c, h2=h2, rt=rt: g(f"v_cvt_pk_bf16_f32 {v(base + 2 * rt + h2)}, {v(c + 2 * h2)}, {v(c + 2 * h2 + 1)}"), 1, 2))
            if rt in (1, 3):
                pidx = 2 * r + (rt >> 1)
                def stx4(rt=rt, pidx=pidx):
                    g(f"s_add_u32 {s(S_ST)}, {s(S_T2)}, {(pidx * 28 + 4 * st) * 1024}")
                    stok[st] = g(f"buffer_store_dwordx4 {v(base + 2 * (rt - 1), 4)}, {v(V_F)}, {s(SRD_P, 4)}, {s(S_ST)} offen {o.stflag}")
                if not o.nost: fl.append(F(stx4, 2, 2))
            if rt == 4:
                def stx2():
                    g(f"s_add_u32 {s(S_ST)}, {s(S_T2)}, {(112 + 4 * (st >> 1)) * 1024 + (st & 1) * 512}")
                    stok[st] = g(f"buffer_store_dwordx2 {v(base + 8, 2)}, {v(V_L8)}, {s(SRD_P, 4)}, {s(S_ST)} offen {o.stflag}")
                if not o.nost: fl.append(F(stx2, 2, 2))
        if o.fuse and st - 1 in ends:
            fl.append(F(lambda: flag(st - 1), 2, 2))
        return fl
    stok = [None] * 7
    ends = [int(x) for x in o.fgrp.split(",")]
    def flag(st):
        g.wait(stok[st])
        g("s_mov_b64 exec, 1")
        g(f"buffer_{'store_dword' if o.fw == 'store' else 'atomic_swap'} {v(V_EP)}, off, {s(SRD_WS, 4)}, {s(S_FW)} offset:{128 * st} sc1")
        g("s_mov_b64 exec, -1")
    g(f"s_lshl_b32 {s(S_T2)}, {s(S_W)}, 10")
    run(a_reads(46))
    atok[0] = g.last("lg")
    if o.fuse:
        g(f"v_cmp_eq_u32 vcc, 0, {v(V_EP)}")
        g.nop(2)
        g(f"s_cbranch_vccnz L_ep_{tag}")
        g.label(f"L_epok_{tag}")
    tile_major("wo", 14, None, frag_reads(obase), sacc, out_fillers, True, -1, 46)
    stamp(g, o, "out")
    if o.fuse:
        flag(6)
        stamp(g, o, "flag")
        D = V_A
        g(f"s_mov_b32 {s(S_CNT)}, 0x100000")
        g(f"s_mov_b32 {s(S_T3)}, 0xffff")
        if r == 0:
            g(f"s_cmp_eq_u32 {s(S_H)}, 15")
            g(f"s_cselect_b32 {s(S_XH)}, 0, -1")
        g(f"s_branch L_poll1_{tag}" if o.exp not in (1, 3) else f"s_branch L_exp{o.exp}_{tag}")
        g.label(f"L_poll_{tag}")
        if o.sleep: g(f"s_sleep {o.sleep}")
        g.label(f"L_poll1_{tag}")
        g(f"s_mov_b32 exec_lo, {s(S_T3)}")
        g("s_mov_b32 exec_hi, 0")
        g(f"v_mov_b32 {v(V_TMP)}, 0")
        g(f"buffer_atomic_or {v(V_TMP)}, {v(V_L4)}, {s(SRD_WS, 4)}, {s(S_FR)} offen sc0 sc1")
        g(f"s_sub_u32 {s(S_CNT)}, {s(S_CNT)}, 1")
        g(f"s_cbranch_scc1 L_k1_end")
        g.wait_all(lg=False, force=True)
        g(f"v_cmp_eq_u32 vcc, {v(V_TMP)}, {v(V_EP)}")
        g("s_mov_b32 exec_lo, -1")
        g(f"s_mov_b32 exec_hi, {s(S_XH) if r == 0 else -1}")
        g(f"s_and_b32 {s(S_T)}, vcc_lo, {s(S_T3)}")
        g(f"s_cbranch_scc0 L_poll_{tag}")
        g(f"s_xor_b32 {s(S_T3)}, {s(S_T3)}, {s(S_T)}")
        if o.dyn:
            for h in range(16):
                g(f"s_bitcmp1_b32 {s(S_T)}, {h}")
                g(f"s_cbranch_scc0 L_skip{h}_{tag}")
                g(f"s_add_u32 {s(S_ST)}, {s(S_RD)}, {h * SLAB}")
                g(f"buffer_load_dwordx4 {v(D + 4 * h, 4)}, {v(V_F)}, {s(SRD_WS, 4)}, {s(S_ST)} offen {o.rdflag}")
                g.label(f"L_skip{h}_{tag}")
            g(f"s_cmp_lg_u32 {s(S_T3)}, 0")
            g(f"s_cbranch_scc1 L_poll1_{tag}")
            stamp(g, o, "poll")
            g.wait_all(lg=False, force=True)
            g.pending.clear()
        else:
            g(f"s_cbranch_scc1 L_poll_{tag}")
            g.label(f"L_exp3_{tag}")
            stamp(g, o, "poll")
            if o.exp == 2: g(f"s_branch L_exp1_{tag}")
            for h in range(16):
                g(f"buffer_load_dwordx4 {v(D + 4 * h, 4)}, {v(V_F)}, {s(SRD_WS, 4)}, {s(S_RD)} offen {o.rdflag}")
                if h < 15: g(f"s_add_u32 {s(S_RD)}, {s(S_RD)}, {SLAB}")
        g(f"s_mov_b32 {s(S_T)}, 0x00003f80")
        g(f"s_mov_b32 {s(S_T2)}, 0x3f800000")
        C = V_ACC
        for h in range(16):
            for i in range(4):
                src = D + 4 * h + i
                if h == 0:
                    g(f"v_lshlrev_b32 {v(C + 2 * i)}, 16, {v(src)}")
                    g(f"v_and_b32 {v(C + 1 + 2 * i)}, 0xffff0000, {v(src)}")
                elif o.dot:
                    g(f"v_dot2c_f32_bf16 {v(C + 2 * i)}, {s(S_T)}, {v(src)}")
                    g(f"v_dot2c_f32_bf16 {v(C + 2 * i + 1)}, {s(S_T2)}, {v(src)}")
                else:
                    tt = C + 8 + 2 * (i & 1)
                    g(f"v_lshlrev_b32 {v(tt)}, 16, {v(src)}")
                    g(f"v_and_b32 {v(tt + 1)}, 0xffff0000, {v(src)}")
                    g(f"v_pk_add_f32 {v(C + 2 * i, 2)}, {v(C + 2 * i, 2)}, {v(tt, 2)}")
        g.nop(3)
        for i in range(4):
            g(f"v_cvt_pk_bf16_f32 {v(C + 12 + i)}, {v(C + 2 * i)}, {v(C + 1 + 2 * i)}")
        g(f"buffer_store_dwordx2 {v(C + 12, 2)}, {v(V_OA)}, {s(SRD_OUT, 4)}, 0 offen")
        g(f"buffer_store_dwordx2 {v(C + 14, 2)}, {v(V_OA + 1)}, {s(SRD_OUT, 4)}, 0 offen")
        g.label(f"L_exp1_{tag}")
        stamp(g, o, "sum")
    if o.stamps:
        g.wait_all(force=True)
        stamp(g, o, "drain")
        g("s_waitcnt lgkmcnt(0)")
        g(f"s_mov_b32 {s(SRD_P)}, {s(S_PTR + 14)}")
        g(f"s_mov_b32 {s(SRD_P + 1)}, {s(S_PTR + 15)}")
        g(f"s_mov_b32 {s(SRD_P + 2)}, {WS}")
        g(f"s_lshl_b32 {s(S_T)}, s2, 2")
        g(f"s_add_u32 {s(S_T)}, {s(S_T)}, {s(S_W)}")
        g(f"s_lshl_b32 {s(S_T)}, {s(S_T)}, 7")
        g(f"s_add_u32 {s(S_T)}, {s(S_T)}, {STAMP_OFF}")
        g(f"v_mov_b32 v1, 0")
        for i in range(len(o.slist.split(','))):
            g(f"v_mov_b32 v2, {s(S_STAMP + 2 * i)}")
            g(f"v_mov_b32 v3, {s(S_STAMP + 2 * i + 1)}")
            g(f"buffer_store_dwordx2 v[2:3], v1, {s(SRD_P, 4)}, {s(S_T)} offen offset:{8 * i}")
            g.nop(2)
    g("s_endpgm")

    if o.fuse:
        g.label(f"L_ep_{tag}")
        g.reset_state()
        g(f"s_mov_b32 {s(S_CNT)}, 0x100000")
        g(f"v_mov_b32 {v(V_TMP)}, 0")
        g.label(f"L_ep2_{tag}")
        g(f"global_load_dword {v(V_EP)}, {v(V_TMP)}, {s(S_PTR + 12, 2)} sc1")
        g.wait_all(lg=False, force=True)
        g(f"s_sub_u32 {s(S_CNT)}, {s(S_CNT)}, 1")
        g(f"s_cbranch_scc1 L_epok_{tag}")
        g(f"v_cmp_eq_u32 vcc, 0, {v(V_EP)}")
        g.nop(2)
        g(f"s_cbranch_vccnz L_ep2_{tag}")
        g(f"s_branch L_epok_{tag}")

    g.label(f"L_slow_{tag}")
    g.reset_state()
    KF = 208
    VK = V_TMP + 1
    VM = V_LS
    VP = V_TMP + 2
    g.wait_all(force=True)
    g.nop(8)
    g("s_barrier")
    g(f"s_mov_b32 {s(S_FLAG)}, 1")
    g(f"v_and_b32 {v(VK)}, 15, v0")
    g(f"v_lshlrev_b32 {v(VK)}, 9, {v(VK)}")
    g(f"v_lshrrev_b32 {v(V_TMP)}, 4, v0")
    g(f"v_lshl_add_u32 {v(VK)}, {v(V_TMP)}, 4, {v(VK)}")
    g(f"v_add_u32 {v(VK)}, 2048, {v(VK)}")
    for rt in range(NT):
        g(f"v_mov_b32 {v(VM + rt)}, 0xff800000")

    def slow_tile(par):
        for ks in range(8):
            g(f"buffer_load_dwordx4 {v(KF + 4 * ks, 4)}, {v(VK)}, {s(SRD_K, 4)}, {s(S_SO)} offen offset:{64 * ks}")
        for ks in range(8):
            for rt in range(NT):
                g(mfma(v(sacc(par, rt), 4), v(KF + 4 * ks, 4), BF(ks, rt), ks == 0))
    g(f"s_mov_b32 {s(S_SO)}, 0")
    g.label(f"L_slow1_{tag}")
    slow_tile(0)
    for rt in range(NT):
        c = sacc(0, rt)
        g(f"v_max3_f32 {v(VM + rt)}, {v(VM + rt)}, {v(c)}, {v(c + 1)}")
        g(f"v_max3_f32 {v(VM + rt)}, {v(VM + rt)}, {v(c + 2)}, {v(c + 3)}")
    g(f"s_add_u32 {s(S_SO)}, {s(S_SO)}, 8192")
    g(f"s_cmp_lt_u32 {s(S_SO)}, 65536")
    g(f"s_cbranch_scc1 L_slow1_{tag}")
    for rt in range(NT):
        m = VM + rt
        for op in ("v_permlane32_swap_b32", "v_permlane16_swap_b32"):
            g(f"v_mov_b32 {v(V_TMP)}, {v(m)}")
            g(f"{op} {v(V_TMP)}, {v(m)}")
            g.nop(2)
            g(f"v_max_f32 {v(m)}, {v(m)}, {v(V_TMP)}")
        g(f"ds_write_b32 {v(V_LW)}, {v(m)} offset:{2048 + rt * 256}")
    g.wait_all(force=True)
    g("s_barrier")
    for rt in range(NT):
        p = V_B + 4 * rt
        g(f"ds_read_b128 {v(p, 4)}, {v(V_LR)} offset:{2048 + rt * 256}")
        g(f"v_max3_f32 {v(p)}, {v(p)}, {v(p + 1)}, {v(p + 2)}")
        g(f"v_max_f32 {v(VM + rt)}, {v(p)}, {v(p + 3)}")
    for rt in range(NT):
        for i in range(4):
            g(f"v_mov_b32 {v(lacc(rt) + i)}, 0")
    g(f"s_mov_b32 {s(S_CNT)}, 0")
    g.label(f"L_slow2_{tag}")
    for pi in range(4):
        half, idx = pgroup(pi)
        g(f"s_cmp_eq_u32 {s(S_CNT)}, {pi}")
        g(f"s_cselect_b32 {s(S_SO)}, {ktiles[2 * pi] * 8192}, {s(S_SO)}")
        g(f"s_cselect_b32 {s(S_T)}, {half * HALF + idx * 4 * NT * 1024}, {s(S_T)}")
    g(f"v_add_u32 {v(VP)}, {s(S_T)}, {v(V_PW)}")
    for par in range(2):
        slow_tile(par)
        if par == 0:
            g(f"s_add_u32 {s(S_SO)}, {s(S_SO)}, 8192")
        for rt in range(NT):
            c = sacc(par, rt)
            for i in range(4):
                g(f"v_sub_f32 {v(c + i)}, {v(c + i)}, {v(VM + rt)}")
            for i in range(4):
                g(f"v_exp_f32 {v(c + i)}, {v(c + i)}")
            for h2 in range(2):
                g(f"v_cvt_pk_bf16_f32 {v(pk(rt) + 2 * par + h2)}, {v(c + 2 * h2)}, {v(c + 2 * h2 + 1)}")
    for rt in range(NT):
        g(f"ds_write_b128 {v(VP)}, {v(pk(rt), 4)} offset:{rt * 1024}")
        g(mfma(v(lacc(rt), 4), v(V_ONE, 4), v(pk(rt), 4), False))
    g(f"s_add_u32 {s(S_CNT)}, {s(S_CNT)}, 1")
    g(f"s_cmp_lt_u32 {s(S_CNT)}, 4")
    g.nop(8)
    g(f"s_cbranch_scc1 L_slow2_{tag}")
    write_l()
    g.wait_all(force=True)
    g.nop(8)
    g("s_barrier")
    g(f"s_branch L_pv_{tag}")


HEAD = """; Fused MHA block: out = softmax((x wq) K^T / 16) V wo   (B=8, Sq=144, D=448, H=16, Sk=512, Dh=256, bf16)
; kernarg: x@0 k_cache@8 v_cache@16 wq@24 wo@32 out@40 debug@48 ws@56
; One workgroup per (batch, head, row half): q-projection, attention and that head's share of the output
; projection; the per-head partial outputs are handed over through ws and summed by the same workgroups.
"""


KN = "standalone__mha_block_cached__near_ridge_kernel"


def build(o):
    g = Gen()
    g.raw(HEAD.rstrip())
    g.raw(f"; @launch grid=(256,1,1) block=(256,1,1) lds={LDS_BYTES}")
    g.raw(f'.amdgcn_target "amdgcn-amd-amdhsa--gfx950"\n.text\n.globl {KN}\n.p2align 8\n.type {KN},@function')
    g.label(KN)
    prologue(g, o)
    g(f"s_cmp_eq_u32 {s(S_R)}, 1")
    g("s_cbranch_scc1 L_light")
    g.reset_state(); g.nop(4)
    body(g, o, 5, "h")
    g.raw(".p2align 6")
    g.label("L_light")
    g.reset_state(); g.nop(4)
    body(g, o, 4, "l")
    g.label("L_k1_end")
    g("s_endpgm")
    g.raw(kd(KN, 512, 256))
    return g


if __name__ == "__main__":
    o = Opt()
    out = sys.argv[1]
    for kv in sys.argv[2:]:
        k, _, val = kv.partition("=")
        cur = getattr(o, k)
        if isinstance(cur, bool): val = val in ("1", "true", "True")
        elif isinstance(cur, int): val = int(val)
        else: val = val.replace("+", " ")
        setattr(o, k, val)
    g = build(o)
    open(out, "w").write(g.text())
    print(out, "instrs", g.ninstr, "nops", g.nnops, file=sys.stderr)
```

```python
import re

REG_RE = re.compile(r"^-?(?:abs\()?([vas])(?:(\d+)|\[(\d+):(\d+)\])\)?$")
TRANS = ("v_exp_f32", "v_log_f32", "v_rcp_f32", "v_rsq_f32", "v_sqrt_f32", "v_sin_f32", "v_cos_f32")


def reg(kind, lo, n=1):
    return f"{kind}{lo}" if n == 1 else f"{kind}[{lo}:{lo + n - 1}]"


def v(lo, n=1): return reg("v", lo, n)
def a(lo, n=1): return reg("a", lo, n)
def s(lo, n=1): return reg("s", lo, n)


def regs_of(op):
    op = op.strip()
    if op == "vcc":
        return [("s", "vcc")]
    if op == "m0":
        return [("s", "m0")]
    m = REG_RE.match(op)
    if not m:
        return []
    k = m.group(1)
    if m.group(2) is not None:
        return [(k, int(m.group(2)))]
    return [(k, i) for i in range(int(m.group(3)), int(m.group(4)) + 1)]


class Tok:
    __slots__ = ("q", "n")

    def __init__(self, q, n):
        self.q = q
        self.n = n


class Gen:
    def __init__(self):
        self.lines = []
        self.reset_state()
        self.ninstr = 0
        self.nnops = 0

    def reset_state(self):
        self.pos = 0
        self.issued = {"vm": 0, "lg": 0}
        self.done = {"vm": 0, "lg": 0}
        self.pending = {}
        self.lastw = {}
        self.cread = {}
        self.stread = {}

    def snapshot(self):
        import copy
        return copy.deepcopy((self.pos, self.issued, self.done, self.pending, self.lastw, self.cread, self.stread))

    def restore(self, snap):
        import copy
        (self.pos, self.issued, self.done, self.pending, self.lastw, self.cread, self.stread) = copy.deepcopy(snap)

    def raw(self, text):
        self.lines.append(text)

    def comment(self, text):
        self.lines.append("; " + text)

    def label(self, name):
        self.lines.append(name + ":")

    def _out(self, text, states=1):
        self.lines.append("    " + text)
        self.pos += states
        self.ninstr += 1

    def nop(self, n):
        while n > 0:
            k = min(n, 16)
            self._out(f"s_nop {k - 1}", k)
            self.nnops += 1
            n -= k

    def wait(self, *toks):
        need = {}
        for t in toks:
            if t is None:
                continue
            if self.done[t.q] >= t.n:
                continue
            need[t.q] = max(need.get(t.q, 0), t.n)
        if not need:
            return
        parts = []
        for q, n in need.items():
            cnt = self.issued[q] - n
            mx = 62 if q == "vm" else 14
            if cnt > mx:
                cnt = mx
            self.done[q] = self.issued[q] - cnt
            parts.append(("vmcnt" if q == "vm" else "lgkmcnt") + f"({cnt})")
        self._out("s_waitcnt " + " ".join(sorted(parts, reverse=True)))

    def last(self, q):
        return Tok(q, self.issued[q])

    def wait_all(self, vm=True, lg=True, force=False):
        if force:
            parts = (["vmcnt(0)"] if vm else []) + (["lgkmcnt(0)"] if lg else [])
            self._out("s_waitcnt " + " ".join(parts))
            if vm: self.done["vm"] = self.issued["vm"]
            if lg: self.done["lg"] = self.issued["lg"]
            return
        t = []
        if vm: t.append(self.last("vm"))
        if lg: t.append(self.last("lg"))
        self.wait(*t)

    def _issue(self, q):
        self.issued[q] += 1
        return Tok(q, self.issued[q])

    def __call__(self, text):
        text = text.strip()
        op, _, rest = text.partition(" ")
        ops = [o.strip() for o in rest.split(",")] if rest else []
        mods = ""
        if ops:
            parts = ops[-1].split()
            if parts:
                ops[-1] = parts[0]
                mods = " ".join(parts[1:])
        R = [regs_of(o) for o in ops]
        flat = lambda l: [x for y in l for x in y]
        kind = None
        reads, writes, creads = [], [], []
        asyncq = None
        if op.startswith("v_mfma"):
            kind = "mfma"; writes = R[0]; reads = flat(R[1:3]); creads = R[3]
        elif op.startswith("ds_read"):
            kind = "dsr"; writes = R[0]; reads = R[1]; asyncq = "lg"
        elif op.startswith("ds_write"):
            kind = "dsw"; reads = flat(R); asyncq = "lg"
        elif op.startswith("buffer_load") and "lds" in mods.split():
            kind = "dma"; reads = flat(R) + [("s", "m0")]; asyncq = "vm"
        elif op.startswith("buffer_load"):
            kind = "vld"; writes = R[0]; reads = flat(R[1:]); asyncq = "vm"
        elif op.startswith("global_load"):
            kind = "vld"; writes = R[0]; reads = flat(R[1:]); asyncq = "vm"
        elif op.startswith("buffer_store") or op.startswith("buffer_atomic"):
            kind = "vst"; reads = flat(R); asyncq = "vm"
        elif op.startswith("v_permlane"):
            kind = "perm"; writes = flat(R); reads = flat(R)
        elif op.startswith("v_readfirstlane") or op.startswith("v_readlane"):
            kind = "rdlane"; writes = R[0]; reads = flat(R[1:])
        elif op.startswith("v_"):
            kind = "trans" if op.startswith(TRANS) else ("dpp" if "_dpp" in op else "valu")
            writes = R[0]; reads = flat(R[1:])
            if op.startswith(("v_fmac", "v_dot2c")):
                reads = reads + R[0]
        elif op.startswith("s_"):
            kind = "salu"
            if op.startswith(("s_cmp", "s_cbranch", "s_branch", "s_barrier", "s_waitcnt", "s_nop", "s_endpgm", "s_setprio", "s_sleep", "s_bitcmp")):
                reads = flat(R)
            else:
                writes = R[0] if R else []; reads = flat(R[1:])
        else:
            raise ValueError("unknown op " + text)

        toks = [self.pending[r] for r in reads + creads + writes if r in self.pending]
        if toks:
            self.wait(*toks)
            for r in reads + creads + writes:
                self.pending.pop(r, None)

        need = 0
        isv = kind in ("valu", "trans", "dpp", "perm", "rdlane")

        def req(p, n):
            nonlocal need
            need = max(need, n - (self.pos - p - 1))

        for r in reads + creads:
            w = self.lastw.get(r)
            if not w:
                continue
            wk, p, ex = w
            if wk in ("valu", "trans", "dpp", "perm", "rdlane"):
                if r[0] == "s":
                    if isv: req(p, 2)
                    elif kind in ("dma", "vld", "vst"): req(p, 5)
                    elif kind == "salu": req(p, 1)
                else:
                    if kind == "mfma": req(p, 2)
                    elif kind in ("perm", "dpp"): req(p, 2)
                    elif kind == "rdlane": req(p, 1)
                    elif wk == "trans" and kind != "trans": req(p, 1)
            elif wk == "mfma":
                if kind == "mfma":
                    if r in creads and r not in reads:
                        if ex != tuple(creads): req(p, 6)
                    else:
                        req(p, 8)
                else:
                    req(p, 8)
            elif wk == "salu":
                if r == ("s", "m0") and kind == "dma": req(p, 1)
        for r in writes:
            w = self.lastw.get(r)
            if w and w[0] == "mfma" and kind != "mfma":
                req(w[1], 8)
            if w and w[0] == "mfma" and kind == "mfma" and w[2] != tuple(writes):
                req(w[1], 8)
            if isv and r in self.cread:
                req(self.cread[r], 3)
            if r in self.stread:
                req(self.stread[r], 2)
        if need > 0:
            self.nop(need)

        p = self.pos
        self._out(text)
        for r in writes:
            self.lastw[r] = (kind, p, tuple(writes) if kind == "mfma" else None)
        for r in creads:
            self.cread[r] = p
        if kind == "vst" and ("x4" in op or "x3" in op):
            for r in R[0]:
                self.stread[r] = p
        if asyncq:
            t = self._issue(asyncq)
            if kind in ("dsr", "vld"):
                for r in writes:
                    self.pending[r] = t
            return t
        return None

    def text(self):
        return "\n".join(self.lines) + "\n"


def kd(name, vgpr, acc, sgpr=102):
    return f"""
.section .rodata,"a"
.p2align 6
.amdhsa_kernel {name}
  .amdhsa_next_free_vgpr {vgpr}
  .amdhsa_next_free_sgpr {sgpr}
  .amdhsa_accum_offset {acc}
  .amdhsa_group_segment_fixed_size 0
  .amdhsa_kernarg_size 64
  .amdhsa_user_sgpr_count 2
  .amdhsa_user_sgpr_kernarg_segment_ptr 1
  .amdhsa_system_sgpr_workgroup_id_x 1
  .amdhsa_float_denorm_mode_32 3
.end_amdhsa_kernel
.text
"""
```

```python
import sys, struct, math
from asmgen import Gen, v, a, s, kd, Tok

WS = 268435456
STAMP_OFF = WS - (4 << 20)
SLAB = 129 * 1024
FLAG_OFF = 17 << 20
EP_OFF = FLAG_OFF + (1 << 20)
HALF = 49152
BIAS = 3072
LDS_X = 40960
LDS_L = 90112
LDS_RING = 94208
LDS_BYTES = LDS_RING + 4 * 16384

def f32(x): return "0x%08x" % struct.unpack("<I", struct.pack("<f", x))[0]

S_W = 3
SRD_X, SRD_K, SRD_V, SRD_WQ, SRD_WO, SRD_P = 4, 8, 12, 16, 20, 24
S_RING = 28
S_B, S_H, S_R = 32, 33, 34
S_T = 35
S_PTR = 36
S_SO = 36
S_XM = 37
S_XM3 = 38
S_FLAG = 39
S_FW = 40
S_FR = 41
S_RD = 42
S_XH = 43
S_PF = 44
SRD_WS, SRD_OUT = SRD_X, SRD_WQ
S_XO = 52
S_WQO = 59
S_SH = 73
S_SC = 74
S_T2 = 76
S_T3 = 77
S_ST = 78
S_CNT = 79
S_KX = 1
S_VX = 0
S_STAMP = 80

V_T = 1
V_WO = 5
V_NR = 6
V_NX = 8
V_F = 10
V_QW = 12
V_LW = 13
V_LR = 14
V_PW = 15
V_OW = 17
V_DWQ = 18
V_DK = 22
V_DV = 26
V_DWO = 30
V_DX = 34
V_L8 = 37
V_TMP = 38
V_ONE = 44
V_ACC = 48
V_A = 128
V_B = 160
V_PK = 200
V_RI = 240
V_LS = 245
V_EP = 250
V_OA = 251
V_PO = 253
V_L4 = 254
V_WO2 = 255
V_H6 = 224
A_HOLD = 160


class Opt:
    stamps = False
    cyc = False
    slist = "start,first,q,p,o,out,flag,poll,sum,drain"
    kflag = ""
    knt = 99
    vflag = ""
    wqflag = ""
    woflag = ""
    xflag = ""
    stflag = "sc1"
    rdflag = "sc1"
    outflag = ""
    codepf = True
    wopf = "25,38"
    flagd = 1
    xs = "0:0,1:123,5:4,6:5,7:6"
    alt = False
    fgrp = "3,6"
    dyn = False
    warmf = True
    exp = 0
    tlb = False
    khold = 0
    whold = 7
    wpos = "2,8"
    kd = 3
    kh = "014589"
    rtm = True
    wlate = False
    wafter = True
    x_hit = False
    ph = 2
    latew = 2
    spread = True
    pace1 = True
    pace2 = True
    pace3 = True
    khi = 8
    x_nobar = False
    x_nodma = False
    x_nost = False
    x_noepi = False


def stamp(g, o, name):
    if o.stamps:
        names = o.slist.split(",")
        if name in names:
            i = names.index(name)
            g(f"{'s_memtime' if o.cyc else 's_memrealtime'} {s(S_STAMP + 2 * i, 2)}")


def srd(g, dst, ptr, off, total, bias=0):
    if bias:
        g(f"s_sub_u32 {s(ptr)}, {s(ptr)}, {bias}")
        g(f"s_subb_u32 {s(ptr + 1)}, {s(ptr + 1)}, 0")
    g(f"s_add_u32 {s(dst)}, {s(ptr)}, {s(off)}")
    g(f"s_addc_u32 {s(dst + 1)}, {s(ptr + 1)}, 0")
    g(f"s_sub_u32 {s(dst + 2)}, {total + bias}, {s(off)}")
    g(f"s_mov_b32 {s(dst + 3)}, 0x20000")


def prologue(g, o):
    stamp(g, o, "start")
    g("s_cmp_ge_u32 s2, 256")
    g("s_cbranch_scc1 L_k1_end")
    g(f"s_load_dwordx16 {s(S_PTR, 16)}, s[0:1], 0")
    g("v_lshrrev_b32 v1, 6, v0")
    g("v_and_b32 v0, 63, v0")
    g(f"v_readfirstlane_b32 {s(S_W)}, v1")
    q, pos, t0, t1, t2, t3 = range(V_TMP, V_TMP + 6)
    g(f"v_lshrrev_b32 {v(q)}, 3, v0")
    g(f"v_and_b32 {v(pos)}, 7, v0")
    g(f"s_bfe_u32 {s(S_R)}, s2, 0x10003")
    g(f"s_bfe_u32 {s(S_B)}, s2, 0x30004")
    g(f"s_lshr_b32 {s(S_T2)}, s2, 7")
    g(f"s_and_b32 {s(S_H)}, s2, 7")
    g(f"s_lshl1_add_u32 {s(S_H)}, {s(S_H)}, {s(S_T2)}")
    g(f"s_bfe_u32 {s(S_SH)}, s2, 0x40003")
    g(f"s_mul_i32 {s(S_T2)}, {s(S_T2)}, 3")
    g(f"s_add_u32 {s(S_T)}, {s(S_B)}, {s(S_T2)}")
    g(f"s_cmp_ge_u32 {s(S_T)}, 7")
    g(f"s_cselect_b32 {s(S_T2)}, 7, 0")
    g(f"s_sub_u32 {s(S_CNT)}, {s(S_T)}, {s(S_T2)}")
    g(f"s_lshl_b32 {s(S_XO)}, {s(S_CNT)}, 7")
    g(f"s_lshl1_add_u32 {s(S_T)}, {s(S_CNT)}, {s(S_R)}")
    g(f"s_lshl_b32 {s(S_WQO)}, {s(S_T)}, 18")
    g(f"s_lshl_b32 {s(S_T)}, {s(S_W)}, 14")
    g(f"s_add_u32 {s(S_RING)}, {s(S_T)}, {LDS_RING}")
    g(f"v_and_b32 {v(t3)}, 6, {v(q)}")
    g(f"v_xor_b32 {v(t3)}, {v(t3)}, {v(pos)}")
    g(f"v_lshlrev_b32 {v(t3)}, 4, {v(t3)}")
    g(f"v_and_b32 {v(t1)}, 4, {v(q)}")
    g(f"v_add_u32 {v(t1)}, {v(t1)}, {v(q)}")
    g(f"v_lshl_add_u32 {v(V_DWQ)}, {v(t1)}, 13, {v(t3)}")
    for j, kb in enumerate([0, 16, 4, 20]):
        if j: g(f"v_add_u32 {v(V_DWQ + j)}, {kb * 8192 - 1024 * j}, {v(V_DWQ)}")
    g(f"v_mul_u32_u24 {v(t1)}, 896, {v(q)}")
    g(f"v_lshrrev_b32 {v(t0)}, 1, {v(q)}")
    g(f"v_xor_b32 {v(t0)}, {v(t0)}, {v(pos)}")
    g(f"v_lshlrev_b32 {v(t0)}, 4, {v(t0)}")
    g(f"v_xor_b32 {v(t2)}, 64, {v(t0)}")
    g(f"s_mul_i32 {s(S_T)}, {s(S_W)}, {16 * 896}")
    g(f"v_add3_u32 {v(V_DX)}, {v(t1)}, {v(t0)}, {s(S_T)}")
    g(f"s_add_u32 {s(S_T)}, {s(S_T)}, {8 * 896 - 1024}")
    g(f"v_add3_u32 {v(V_DX + 1)}, {v(t1)}, {v(t2)}, {s(S_T)}")
    g(f"s_mul_i32 {s(S_T)}, {s(S_B)}, {144 * 896}")
    g(f"s_mul_i32 {s(S_T2)}, {s(S_R)}, {80 * 896}")
    g(f"s_add_u32 {s(S_T)}, {s(S_T)}, {s(S_T2)}")
    g(f"s_lshl2_add_u32 {s(S_T2)}, {s(S_H)}, {s(S_W)}")
    g(f"s_lshl_b32 {s(S_T2)}, {s(S_T2)}, 7")
    g(f"s_lshl_b32 m0, {s(S_W)}, 11")
    g("s_waitcnt lgkmcnt(0)")
    srd(g, SRD_X, S_PTR, S_T, 8 * 144 * 896)
    stamp(g, o, "pro")
    g(f"buffer_load_dwordx4 {v(V_DX)}, {s(SRD_X, 4)}, {s(S_XO)} offen {o.xflag} lds")
    g(f"buffer_load_dwordx4 {v(V_DX + 1)}, {s(SRD_X, 4)}, {s(S_XO)} offen offset:1024 {o.xflag} lds")
    g(f"s_mov_b32 m0, {s(S_RING)}")
    srd(g, SRD_WQ, S_PTR + 6, S_T2, 448 * 8192)
    for j in range(4):
        g(f"buffer_load_dwordx4 {v(V_DWQ + j)}, {s(SRD_WQ, 4)}, {s(S_WQO)} offen offset:{1024 * j} {o.wqflag} lds")
    if o.codepf:
        g(f"s_getpc_b64 {s(S_SC, 2)}")
        g(f"s_lshl2_add_u32 {s(S_T)}, {s(S_SH)}, {s(S_W)}")
        g(f"v_lshl_add_u32 v2, v0, 6, {s(S_T)}")
        g(f"v_lshlrev_b32 v2, 7, v2")
        g(f"v_min_u32 v2, L_main_end-{KN}-512, v2")
        g("s_mov_b64 exec, 0x1ff")
        g(f"global_load_dword {v(V_RI)}, v2, {s(S_SC, 2)}")
        g("s_mov_b64 exec, -1")
    g(f"s_lshl_b32 {s(S_T)}, {s(S_W)}, 5")
    g(f"v_xor_b32 {v(V_DX + 2)}, {s(S_T)}, {v(t0)}")
    g(f"s_mul_i32 {s(S_T)}, {s(S_W)}, {4 * 896}")
    g(f"s_add_u32 {s(S_T)}, {s(S_T)}, {64 * 896}")
    g(f"v_add3_u32 {v(V_DX + 2)}, {v(t1)}, {v(V_DX + 2)}, {s(S_T)}")
    g(f"s_lshl_b32 {s(S_XM)}, {s(S_W)}, 11")


def setup2(g, o):
    q, pos, t0, t1, t2, t3 = range(V_TMP, V_TMP + 6)
    g(f"s_xor_b32 {s(S_WQO + 1)}, {s(S_WQO)}, 0x40000")
    for it in range(1, 7):
        g(f"s_add_u32 {s(S_CNT)}, {s(S_CNT)}, 1")
        g(f"s_cmp_eq_u32 {s(S_CNT)}, 7")
        g(f"s_cselect_b32 {s(S_CNT)}, 0, {s(S_CNT)}")
        g(f"s_lshl_b32 {s(S_XO + it)}, {s(S_CNT)}, 7")
        g(f"s_lshl1_add_u32 {s(S_T)}, {s(S_CNT)}, {s(S_R)}")
        g(f"s_lshl_b32 {s(S_WQO + 2 * it)}, {s(S_T)}, 18")
        g(f"s_xor_b32 {s(S_WQO + 2 * it + 1)}, {s(S_WQO + 2 * it)}, 0x40000")
    for i in range(1, 4):
        g(f"s_add_u32 {s(S_RING + i)}, {s(S_RING)}, {4096 * i}")
    g(f"s_lshl_b32 {s(S_KX)}, {s(S_B)}, 13" if o.ph else f"s_mov_b32 {s(S_KX)}, 0")
    g(f"s_and_b32 {s(S_VX)}, {s(S_KX)}, 0xc000")
    g(f"s_and_b32 {s(S_T2)}, {s(S_H)}, {1 if o.ph == 2 else 0}")
    g(f"s_lshl_b32 {s(S_T2)}, {s(S_T2)}, 12")
    g(f"s_and_b32 {s(S_T3)}, {s(S_KX)}, 0x2000")
    g(f"s_or_b32 {s(S_T3)}, {s(S_T3)}, {s(S_T2)}")
    g(f"v_add_u32 {v(V_DWO)}, {v(t1)}, {v(t3)}")
    g(f"v_lshl_add_u32 {v(t3)}, {v(q)}, 9, {v(t3)}")
    for j in range(4):
        g(f"s_xor_b32 {s(S_T)}, {s(S_T3)}, {4096 * j}")
        g(f"s_add_u32 {s(S_T)}, {s(S_T)}, {BIAS - 1024 * j}")
        g(f"v_add_u32 {v(V_DV + j)}, {s(S_T)}, {v(t3)}")
    g(f"v_lshl_add_u32 {v(t0)}, {v(q)}, 9, {v(t0)}")
    g(f"v_lshl_add_u32 {v(t2)}, {v(q)}, 9, {v(t2)}")
    for j in range(4):
        g(f"s_xor_b32 {s(S_T)}, {s(S_T2)}, {4096 * (j & 1)}")
        g(f"s_add_u32 {s(S_T)}, {s(S_T)}, {BIAS + 128 * (j >> 1) - 1024 * j}")
        g(f"v_add_u32 {v(V_DK + j)}, {s(S_T)}, {v(t2 if j & 1 else t0)}")
    g(f"s_lshl4_add_u32 {s(S_T3)}, {s(S_B)}, {s(S_H)}")
    g(f"s_lshl_b32 {s(S_T)}, {s(S_T3)}, 18" if not o.x_hit else f"s_mov_b32 {s(S_T)}, 0")
    g(f"s_lshl_b32 {s(S_T2)}, {s(S_W)}, 7")
    g(f"s_add_u32 {s(S_T2)}, {s(S_T)}, {s(S_T2)}")
    srd(g, SRD_V, S_PTR + 4, S_T2, 1 << 25, BIAS)
    g(f"s_lshl_b32 {s(S_T2)}, {s(S_W)}, 16")
    g(f"s_add_u32 {s(S_T)}, {s(S_T)}, {s(S_T2)}")
    srd(g, SRD_K, S_PTR + 2, S_T, 1 << 25, BIAS)
    g(f"s_lshl3_add_u32 {s(S_T)}, {s(S_H)}, {s(S_W)}")
    g(f"s_mul_i32 {s(S_T)}, {s(S_T)}, {32 * 896}")
    srd(g, SRD_WO, S_PTR + 8, S_T, 4096 * 896)
    g(f"s_mul_i32 {s(S_T)}, {s(S_T3)}, {SLAB}")
    srd(g, SRD_P, S_PTR + 14, S_T, WS)
    g(f"s_lshl_b32 {s(S_XM3)}, {s(S_W)}, 9")
    g(f"s_add_u32 {s(S_XM3)}, {s(S_XM3)}, 8192")


def late_setup(g, NT, obase):
    t0, t1, t2, gg, row = V_TMP, V_TMP + 1, V_TMP + 2, V_TMP + 3, V_TMP + 4
    for j in range(1, 4):
        g(f"v_add_u32 {v(V_DWO + j)}, {(8 * 896 - 1024) * j}, {v(V_DWO)}")
    g(f"v_lshrrev_b32 {v(gg)}, 4, v0")
    g(f"v_and_b32 {v(row)}, 15, v0")
    g(f"v_lshrrev_b32 {v(t0)}, 2, v0")
    g(f"v_and_b32 {v(t1)}, 6, {v(t0)}")
    g(f"v_bfe_u32 {v(t2)}, v0, 1, 1")
    g(f"v_or_b32 {v(t1)}, {v(t1)}, {v(t2)}")
    g(f"v_lshlrev_b32 {v(t1)}, 4, {v(t1)}")
    g(f"v_lshl_add_u32 {v(t1)}, {v(t0)}, 7, {v(t1)}")
    g(f"v_and_b32 {v(t2)}, 1, v0")
    g(f"v_lshl_add_u32 {v(t1)}, {v(t2)}, 3, {v(t1)}")
    for t in range(4):
        g(f"v_xor_b32 {v(t2)}, {32 * t}, {v(t1)}")
        g(f"v_add_u32 {v(V_T + t)}, {s(S_RING)}, {v(t2)}")
    g(f"s_lshl_b32 {s(S_T)}, {s(S_W)}, 5")
    g(f"v_xor_b32 {v(t2)}, {s(S_T)}, {v(t1)}")
    g(f"v_add_u32 {v(V_WO)}, {LDS_RING}, {v(t2)}")
    g(f"v_add_u32 {v(V_WO2)}, {LDS_X}, {v(t2)}")
    g(f"v_lshrrev_b32 {v(t0)}, 1, {v(row)}")
    g(f"v_xor_b32 {v(t0)}, {v(t0)}, {v(gg)}")
    g(f"v_lshlrev_b32 {v(t0)}, 4, {v(t0)}")
    g(f"v_lshl_add_u32 {v(V_NX)}, {v(row)}, 7, {v(t0)}")
    g(f"v_xor_b32 {v(V_NX + 1)}, 64, {v(V_NX)}")
    g(f"v_add_u32 {v(V_NR)}, {s(S_RING)}, {v(V_NX)}")
    g(f"v_add_u32 {v(V_NR + 1)}, {s(S_RING)}, {v(V_NX + 1)}")
    g(f"v_lshlrev_b32 {v(V_F)}, 4, v0")
    g(f"v_add_u32 {v(V_F + 1)}, {HALF}, {v(V_F)}")
    g(f"v_lshlrev_b32 {v(V_L8)}, 3, v0")
    g(f"v_lshrrev_b32 {v(t0)}, 1, {v(gg)}")
    g(f"v_lshl_add_u32 {v(t0)}, {v(t0)}, 4, {v(row)}")
    g(f"v_lshlrev_b32 {v(t0)}, 4, {v(t0)}")
    g(f"v_and_b32 {v(t1)}, 1, {v(gg)}")
    g(f"v_lshl_add_u32 {v(t0)}, {v(t1)}, 3, {v(t0)}")
    g(f"s_mul_i32 {s(S_T)}, {s(S_W)}, {2 * NT * 1024}")
    g(f"v_add_u32 {v(V_QW)}, {s(S_T)}, {v(t0)}")
    g(f"v_add_u32 {v(V_OW)}, {s(S_T)}, {v(V_F + (1 if obase else 0))}")
    g(f"s_mul_i32 {s(S_T)}, {s(S_W)}, {NT * 1024}")
    g(f"v_add_u32 {v(V_PW)}, {s(S_T)}, {v(V_F)}")
    g(f"v_add_u32 {v(V_PW + 1)}, {s(S_T)}, {v(V_F + 1)}")
    g(f"v_lshlrev_b32 {v(t0)}, 4, {v(row)}")
    g(f"v_add_u32 {v(V_LR)}, {LDS_L}, {v(t0)}")
    g(f"s_lshl_b32 {s(S_T)}, {s(S_W)}, 2")
    g(f"v_add_u32 {v(V_LW)}, {s(S_T)}, {v(V_LR)}")
    for i in range(4):
        g(f"v_mov_b32 {v(V_ONE + i)}, 0x3f803f80")
    sc = f32(math.log2(math.e) / 16.0)
    g(f"s_mov_b32 {s(S_SC)}, {sc}")
    g(f"s_mov_b32 {s(S_SC + 1)}, {sc}")
    g(f"s_mov_b32 {s(S_FLAG)}, 0")


def task_tables(r):
    if r == 1:
        t = [(p, s_) for s_ in range(3) for p in range(4)] + [(4, 1), (2, 3), (3, 3), (4, 3)]
    else:
        t = [(0, 3), (1, 3)] + [(p, s_) for s_ in (4, 5, 6) for p in range(4)] + [(4, 5), (4, 6)]
    kt = sum(k << (4 * i) for i, (k, _) in enumerate(t))
    st_ = sum(x << (4 * i) for i, (_, x) in enumerate(t))
    return kt, st_


def fuse_setup(g, o, NT):
    r = 0 if NT == 5 else 1
    kt, stt = task_tables(r)
    ends = [int(x) for x in o.fgrp.split(",")]
    ft = sum(min(e for e in ends if e >= x) << (4 * x) for x in range(7))
    K, ST, T, T2 = S_XO, S_XO + 1, S_XO + 2, S_XO + 3
    P = S_XO + 4
    t0, t1 = V_TMP + 4, V_TMP + 5
    L = []
    L += [f"s_mov_b32 {s(SRD_WS)}, {s(S_PTR + 14)}", f"s_mov_b32 {s(SRD_WS + 1)}, {s(S_PTR + 15)}",
          f"s_mov_b32 {s(SRD_WS + 2)}, {WS}", f"s_mov_b32 {s(SRD_WS + 3)}, 0x20000",
          f"s_mov_b32 {s(SRD_OUT)}, {s(S_PTR + 10)}", f"s_mov_b32 {s(SRD_OUT + 1)}, {s(S_PTR + 11)}",
          f"s_mov_b32 {s(SRD_OUT + 2)}, {8 * 144 * 896}", f"s_mov_b32 {s(SRD_OUT + 3)}, 0x20000",
          f"v_mov_b32 {v(V_PO)}, 0",
          f"global_load_dword {v(V_EP)}, {v(V_PO)}, {s(S_PTR + 12, 2)} sc1",
          f"s_lshl_b32 {s(T)}, {s(S_H)}, 2",
          f"s_mov_b32 {s(P)}, {kt & 0xffffffff}", f"s_mov_b32 {s(P + 1)}, {kt >> 32}",
          f"s_lshr_b64 {s(P, 2)}, {s(P, 2)}, {s(T)}", f"s_and_b32 {s(K)}, {s(P)}, 15",
          f"s_mov_b32 {s(P)}, {stt & 0xffffffff}", f"s_mov_b32 {s(P + 1)}, {stt >> 32}",
          f"s_lshr_b64 {s(P, 2)}, {s(P, 2)}, {s(T)}", f"s_and_b32 {s(ST)}, {s(P)}, 15",
          f"s_lshl_b32 {s(T2)}, {s(S_B)}, 3", f"s_add_u32 {s(T2)}, {s(T2)}, {s(S_W)}", f"s_mul_i32 {s(T2)}, {s(T2)}, 896",
          f"s_add_u32 {s(S_FW)}, {s(T2)}, {FLAG_OFF + r * 4 * 896}", f"s_add_u32 {s(S_FW)}, {s(S_FW)}, {s(T)}",
          f"s_lshl_b32 {s(T)}, {s(ST)}, 2", f"s_lshr_b32 {s(P)}, {ft}, {s(T)}", f"s_and_b32 {s(P)}, {s(P)}, 15",
          f"s_bfe_u32 {s(T)}, {s(K)}, 0x10001", f"s_mul_i32 {s(T)}, {s(T)}, {4 * 7}", f"s_add_u32 {s(T)}, {s(T)}, {s(P)}",
          f"s_lshl_b32 {s(T)}, {s(T)}, 7", f"s_add_u32 {s(T)}, {s(T)}, {s(T2)}", f"s_add_u32 {s(S_FR)}, {s(T)}, {FLAG_OFF}",
          f"s_lshr_b32 {s(T)}, {s(K)}, 2", f"s_lshr_b32 {s(T)}, {s(ST)}, {s(T)}", f"s_lshl_b32 {s(T)}, {s(T)}, 2",
          f"s_mul_i32 {s(T2)}, {s(K)}, 28", f"s_add_u32 {s(T)}, {s(T)}, {s(T2)}", f"s_add_u32 {s(T)}, {s(T)}, {s(S_W)}",
          f"s_lshl_b32 {s(T)}, {s(T)}, 10", f"s_mul_i32 {s(T2)}, {s(S_B)}, {16 * SLAB}", f"s_add_u32 {s(S_RD)}, {s(T)}, {s(T2)}",
          f"s_lshl_b32 {s(T)}, {s(K)}, 3", f"s_mov_b32 {s(P)}, {0 | 32 << 8 | 80 << 16 | 112 << 24}", f"s_mov_b32 {s(P + 1)}, 64",
          f"s_lshr_b64 {s(P, 2)}, {s(P, 2)}, {s(T)}", f"s_and_b32 {s(T)}, {s(P)}, 255",
          f"s_mul_i32 {s(T2)}, {s(S_B)}, 144", f"s_add_u32 {s(T)}, {s(T)}, {s(T2)}", f"s_mul_i32 {s(T)}, {s(T)}, 896",
          f"s_lshr_b32 {s(T2)}, {s(K)}, 2", f"s_andn2_b32 {s(T2)}, {s(ST)}, {s(T2)}", f"s_lshl_b32 {s(T2)}, {s(T2)}, 2",
          f"s_add_u32 {s(T2)}, {s(T2)}, {s(S_W)}", f"s_lshl_b32 {s(T2)}, {s(T2)}, 5", f"s_add_u32 {s(T)}, {s(T)}, {s(T2)}",
          f"v_and_b32 {v(t0)}, 15, v0", f"v_mul_u32_u24 {v(t0)}, 896, {v(t0)}", f"v_lshrrev_b32 {v(t1)}, 4, v0",
          f"v_lshl_add_u32 {v(V_OA)}, {v(t1)}, 3, {v(t0)}",
          f"v_and_b32 {v(t0)}, 7, v0", f"v_mul_u32_u24 {v(t0)}, {2 * 896}, {v(t0)}", f"v_bfe_u32 {v(t1)}, v0, 3, 2",
          f"v_lshl_add_u32 {v(t0)}, {v(t1)}, 3, {v(t0)}", f"v_lshrrev_b32 {v(t1)}, 5, v0",
          f"v_lshl_add_u32 {v(t0)}, {v(t1)}, 7, {v(t0)}"]
    fl = [F(lambda t=t: g(t), 1, 0) for t in L]
    def sel():
        g(f"s_cmp_eq_u32 {s(K)}, 4")
        g(f"s_cselect_b64 vcc, -1, 0")
        g(f"s_cselect_b32 {s(T2)}, 896, {16 * 896}".replace(f", {16 * 896}", f", {s(P)}"))
    fl.append(F(lambda: g(f"s_mov_b32 {s(P)}, {16 * 896}"), 1, 0))
    fl.append(F(sel, 2, 0))
    L2 = [f"v_cndmask_b32 {v(V_OA)}, {v(V_OA)}, {v(t0)}, vcc",
          f"v_add_u32 {v(V_OA)}, {s(T)}, {v(V_OA)}", f"v_add_u32 {v(V_OA + 1)}, {s(T2)}, {v(V_OA)}",

          f"v_lshlrev_b32 {v(V_L4)}, 2, v0"]
    fl += [F(lambda t=t: g(t), 1, 0) for t in L2]
    if o.warmf:
        def warm():
            lab = f"L_nowarm_{NT}"
            g(f"s_cmp_lg_u32 {s(S_H)}, 0")
            g(f"s_cbranch_scc1 {lab}")
            g("s_mov_b64 exec, 1")
            for e in ends:
                g.raw(f"    buffer_atomic_or {v(V_PO)}, off, {s(SRD_WS, 4)}, {s(S_FW)} offset:{128 * e} sc1")
            g("s_mov_b64 exec, -1")
            g.label(lab)
        fl.append(F(warm, 2, 0))
    return fl


class F:
    def __init__(self, fn, cost=1, at=0, ok=None):
        self.fn, self.cost, self.at, self.ok = fn, cost, at, ok

    def ready(self, i):
        return self.at <= i and (self.ok is None or self.ok())


def mfma(d, A, B, first):
    return f"v_mfma_f32_16x16x32_bf16 {d}, {A}, {B}, {'0' if first else d}"


def run_step(g, mf, qm, ql, qb, drain_b=False, b_first=False):
    for i, m in enumerate(mf):
        g(m)
        budget, sal, took = 2, 1, 0
        pend_b = b_first
        while True:
            hit = False
            for q in (ql, qm, qb):
                if q and q[0].ready(i) and q[0].cost <= 0 and (q[0].cost < 0 or sal > 0 or budget > 0):
                    f = q.pop(0)
                    if f.cost == 0:
                        if sal > 0: sal -= 1
                        else: budget -= 1
                    f.fn(); hit = True
                    break
            if hit: continue
            sal = 0
            b_ready = bool(qb) and qb[0].ready(i)
            if pend_b and b_ready:
                f = qb.pop(0); budget -= f.cost; f.fn(); pend_b = False
                continue
            if qm and qm[0].ready(i) and 0 < qm[0].cost <= budget:
                f = qm.pop(0); budget -= f.cost; f.fn()
                continue
            if ql and ql[0].ready(i) and 0 < ql[0].cost <= budget and (took == 0 or not b_ready or qb[0].cost > budget):
                f = ql.pop(0); budget -= f.cost; took += 1; f.fn()
                continue
            if b_ready and qb[0].cost > 0 and (budget >= qb[0].cost or (qb[0].cost > 2 and budget == 2)):
                f = qb.pop(0); budget -= f.cost; f.fn()
                if f.cost > 2: budget = 2
                continue
            break
    while ql or qm:
        if qm and (qm[0].ok is None or qm[0].ok()): qm.pop(0).fn()
        else:
            assert ql[0].ok is None or ql[0].ok()
            ql.pop(0).fn()
    for f in qb:
        f.at = 0
    if drain_b:
        while qb:
            qb.pop(0).fn()


def spread(fl, lo, hi, ok=None):
    nv = sum(1 for f in fl if f.cost > 0)
    k = 0
    for f in fl:
        p = lo + (k * (hi - lo + 1)) // max(nv, 1)
        if f.cost > 0:
            f.at = p; f.ok = ok; k += 1
        else:
            f.at = max(p - 1, 0)
    return fl


def body(g, o, NT, tag):
    r = 0 if NT == 5 else 1
    NM = 4 * NT
    def pgroup(pi):
        return (1 - (pi >> 1), pi & 1)
    pv = []
    for p in (2, 3, 0, 1):
        half, idx = pgroup(p)
        for w2 in range(4):
            pv.append((half, idx * 4 + w2, 128 * w2 + 32 * p))
    obase = 0
    ktiles = list(range(8))

    KH = [int(c, 16) for c in o.kh] if o.khold else []
    first = o.khold in (1, 2) and (o.khold == 1) == (NT == 4)
    WH = o.whold
    wpos = int(o.wpos.split(",")[r])
    seq = [("wq", 0)] + ([("k", i) for i in KH] if first else []) + [("wq", n) for n in range(1, 14)]
    seq += ([] if first else [("k", i) for i in KH]) + [("k", i) for i in range(16) if i not in KH]
    for i in range(16):
        seq.append(("v", i))
        if i == wpos: seq += [("wo", j) for j in range(WH)]
    seq += [("wo", j) for j in range(WH, 14)]
    blocks = []
    nring = npar = 0
    for ty, i in seq:
        b = dict(ty=ty, i=i, hold=None, coop=(ty == "wo"), prev=None)
        if ty == "k" and i in KH: b["hold"] = KH.index(i)
        if ty == "wo" and i < WH: b["hold"] = i
        if ty == "wo" and WH and i >= WH + 4:
            b["slot"] = ("x", i - WH - 4)
            assert i - WH - 4 < 3
        else:
            b["slot"] = ("r", nring & 3)
            if nring >= 4: b["prev"] = len(blocks) - 4
            nring += 1
        if b["hold"] is None:
            b["par"] = npar & 1; npar += 1
        blocks.append(b)
    NB = len(blocks)
    src = {(b["ty"], b["i"]): n for n, b in enumerate(blocks)}
    xs = {int(e.split(":")[0]): [int(c) for c in e.split(":")[1]] for e in o.xs.split(",")}
    xat = {it: src[("wq", n)] for n, its in xs.items() for it in its}
    btok, rtok = [None] * NB, [None] * NB
    seen, free = set(), set()
    Z = {"dma": 1, "rd": 0}
    stok = [None] * 7

    def barrier():
        g("s_barrier")
        for n in range(NB):
            if btok[n] is not None and g.done["vm"] >= btok[n].n: seen.add(n)
            if rtok[n] is not None and g.done["lg"] >= rtok[n].n: free.add(n)

    def x_fillers(it):
        fl = []
        if it:
            fl.append(F(lambda: g(f"s_add_u32 m0, {s(S_XM)}, {it * NT * 2048}"), 0))
            fl.append(F(lambda: g(f"buffer_load_dwordx4 {v(V_DX)}, {s(SRD_X, 4)}, {s(S_XO + it)} offen {o.xflag} lds")))
            fl.append(F(lambda: g(f"buffer_load_dwordx4 {v(V_DX + 1)}, {s(SRD_X, 4)}, {s(S_XO + it)} offen offset:1024 {o.xflag} lds")))
        if NT == 5:
            if it: fl.append(F(lambda: g(f"s_add_u32 m0, {s(S_XM3)}, {it * NT * 2048}"), 0))
            def third():
                g("s_mov_b32 exec_hi, 0")
                g(f"buffer_load_dwordx4 {v(V_DX + 2)}, {s(SRD_X, 4)}, {s(S_XO + it)} offen {o.xflag} lds")
                g("s_mov_b32 exec_hi, -1")
            fl.append(F(third, 2))
        return fl

    def dma_fillers(n, with_x=True):
        b = blocks[n]; ty, i = b["ty"], b["i"]
        fl = []
        def S(txt): fl.append(F(lambda: g(txt), 0))
        def D(txt, j):
            def fn():
                if j == 0 and b["prev"] is not None:
                    p = b["prev"]
                    assert rtok[p] is not None, (n, p)
                    g.wait(rtok[p])
                    assert not blocks[p]["coop"] or p in free, (n, p)
                if j == 0: assert n == 0 or btok[n - 1] is not None, n
                t = g(txt)
                if j == 3: btok[n] = t
            fl.append(F(fn, 1))
        if ty == "wq":
            if with_x:
                for it in xs.get(i, []): fl += x_fillers(it)
            vo, srd_, so, flag, off = V_DWQ, SRD_WQ, s(S_WQO + i), o.wqflag, None
        elif ty == "k":
            off = (i >> 1) * 8192 + (i & 1) * 256
            vo, srd_, flag = V_DK, SRD_K, ("nt" if i >= o.knt else o.kflag)
        elif ty == "v":
            off = pv[i][2] * 512
            vo, srd_, flag = V_DV, SRD_V, o.vflag
        else:
            off = (i & 1) * 128 * 896 + (i >> 1) * 128
            vo, srd_, flag = V_DWO, SRD_WO, o.woflag
        if off is not None:
            S(f"s_mov_b32 {s(S_SO)}, {off}" if ty == "wo" else f"s_xor_b32 {s(S_SO)}, {s(S_KX if ty == 'k' else S_VX)}, {off}")
            so = s(S_SO)
        kind, k = b["slot"]
        S(f"s_mov_b32 m0, {s(S_RING + k)}" if kind == "r" else f"s_add_u32 m0, {s(S_XM)}, {LDS_X + 16384 * k}")
        for j in range(4):
            D(f"buffer_load_dwordx4 {v(vo + j)}, {s(srd_, 4)}, {so} offen offset:{1024 * j} {flag} lds", j)
        return fl

    def issue_upto(n):
        fl = []
        while Z["dma"] <= min(n, NB - 1):
            fl += dma_fillers(Z["dma"])
            Z["dma"] += 1
        return fl

    def areg(n, t, k=4, o2=0):
        b = blocks[n]
        if b["hold"] is None: return v(V_A + 16 * b["par"] + 4 * t + o2, k)
        if b["hold"] < 6: return a(A_HOLD + 16 * b["hold"] + 4 * t + o2, k)
        return v(V_H6 + 4 * t + o2, k)

    def a_reads(n, at=0):
        b = blocks[n]; ty = b["ty"]
        kind, k = b["slot"]
        fl = []
        def chk(): assert not b["coop"] or n in seen, n
        fl.append(F(chk, -1, at))
        def R(txt): fl.append(F(lambda: g(txt), 1, at))
        for t in range(4):
            if ty == "k":
                R(f"ds_read_b128 {areg(n, t)}, {v(V_NR + (t & 1))} offset:{k * 4096 + (t >> 1) * 2048}")
            else:
                if ty != "wo": ad, of = v(V_T + t), k * 4096
                elif kind == "r": ad, of = v(V_WO), k * 4096 + t * 16384
                else: ad, of = v(V_WO2), k * 16384 + t * 4096
                R(f"ds_read_b64_tr_b16 {areg(n, t, 2)}, {ad} offset:{of}")
                R(f"ds_read_b64_tr_b16 {areg(n, t, 2, 2)}, {ad} offset:{of + 2048}")
        def mark(): rtok[n] = g.last("lg")
        fl.append(F(mark, -1, at))
        return fl

    def wait_block(n, bar, at, also=None):
        def w(): g.wait(btok[n], rtok[also] if also is not None else None)
        fl = [F(w, 0, at, lambda: btok[n] is not None)]
        if bar: fl.append(F(barrier, 0, at))
        return fl

    def fetch(upto, at, qm, bar=False, mid=None, lim=999):
        fl = []
        n0 = Z["rd"]
        for n in range(n0, upto + 1):
            b = blocks[n]
            pc = n > n0 and blocks[n - 1]["coop"]
            need = (b["coop"] and n not in seen) or pc or (bar and n == upto)
            fl += wait_block(n, need, at, n - 1 if pc else None)
            if n == upto and mid: fl += mid
            fl += a_reads(n, at)
            if n > n0:
                d = issue_upto(min(n + 3, lim))
                for f in d: f.at = at; f.ok = (lambda qm=qm: not qm)
                fl += d
        Z["rd"] = max(n0, upto + 1)
        return fl

    xbump = [0]
    def b_reads(ty, i, at=0):
        B = V_B + 20 * (i & 1)
        fl = []
        def R(txt): fl.append(F(lambda: g(txt), 1, at))
        if ty == "wq":
            it, e = i >> 1, i & 1
            if it == 4 and e == 0:
                xbump[0] = 32768
                R(f"v_add_u32 {v(V_NX)}, 32768, {v(V_NX)}")
                R(f"v_add_u32 {v(V_NX + 1)}, 32768, {v(V_NX + 1)}")
            def chk(): assert xat[it] in seen, it
            fl.append(F(chk, -1, at))
            for rt in range(NT):
                R(f"ds_read_b128 {v(B + 4 * rt, 4)}, {v(V_NX + (e ^ r))} offset:{(it * NT + rt) * 2048 - xbump[0]}")
        else:
            half, idx, _ = pv[i]
            for rt in range(NT):
                R(f"ds_read_b128 {v(B + 4 * rt, 4)}, {v(V_F + half)} offset:{(idx * NT + rt) * 1024}")
        return fl

    def run(fl):
        for f in fl: f.fn()

    def sp(fl, lo=1, hi=None, ok=None):
        return spread(fl, lo, NM - 1 if hi is None else hi, ok)

    acc = lambda t, rt: V_ACC + 4 * (t * NT + rt)

    if NT == 5:
        g(f"s_lshl_b32 {s(S_T)}, {s(S_W)}, 9")
        g(f"s_add_u32 m0, {s(S_T)}, 8192")
        run(x_fillers(0))
    btok[0] = g.last("vm")
    setup2(g, o)
    g.pending.clear()
    if NT == 4:
        g(f"s_lshl2_add_u32 {s(S_T)}, s2, {s(S_W)}")
        g(f"s_cmp_lg_u32 {s(S_T)}, 32")
        g("s_cbranch_scc1 L_noepoch")
        g(f"s_add_u32 {s(S_PF)}, {s(S_PTR + 14)}, {EP_OFF}")
        g(f"s_addc_u32 {s(S_PF + 1)}, {s(S_PTR + 15)}, 0")
        g(f"s_load_dword {s(S_T)}, {s(S_PF, 2)}, 0")
        g.raw("    s_waitcnt lgkmcnt(0)")
        g(f"s_add_u32 {s(S_T)}, {s(S_T)}, 2")
        g(f"s_or_b32 {s(S_T)}, {s(S_T)}, 1")
        g(f"v_mov_b32 {v(V_EP)}, {s(S_T)}")
        g(f"v_mov_b32 {v(V_PO)}, 0")
        g("s_mov_b64 exec, 1")
        g.raw(f"    global_store_dword {v(V_PO)}, {v(V_EP)}, {s(S_PTR + 12, 2)} sc1")
        g.raw(f"    global_store_dword {v(V_PO)}, {v(V_EP)}, {s(S_PF, 2)} sc1")
        g("s_mov_b64 exec, -1")
        g.label("L_noepoch")
    late_setup(g, NT, obase)
    if first:
        run(issue_upto(2))
    else:
        for it in xs.get(1, []): run(x_fillers(it))
    stamp(g, o, "iss")
    run(fetch(0, 0, [], True, b_reads("wq", 0)))
    stamp(g, o, "first")
    if not first:
        run(dma_fillers(1, False)); Z["dma"] = 2
    run(issue_upto(2))

    qb = []
    nk0 = src[("wq", 13)] + 1
    nks = src[("k", min(i for i in range(16) if i not in KH))]
    lastbar = 0
    for m in range(14):
        n = src[("wq", m)]
        B = V_B + 20 * (m & 1)
        g.wait(g.last("lg"))
        stamp(g, o, f"s{m}")
        mf = [mfma(v(acc(t, rt), 4), areg(n, t), v(B + 4 * rt, 4), m == 0) for rt in range(NT) for t in range(4)]
        wat = NM - 8 - 3 - (0 if NT == 5 else 1)
        qm = sp(issue_upto(min(n + 4, nks + 1)))
        ql = []
        if m < 13:
            n1 = src[("wq", m + 1)]
            bar = (m & 1 and xat[(m + 1) >> 1] not in seen) or (m == 11 and lastbar < 7)
            if bar:
                lastbar = m
                ql = fetch(n1, 1, qm, True, b_reads("wq", m + 1, 1))
            else:
                ql = b_reads("wq", m + 1, 0) + fetch(n1, wat if n1 == n + 1 else 0, qm)
        else:
            if nks > nk0:
                sp(qm, 1, 4)
                ql = fetch(nk0 + 2, 0, qm)
            for rt in range(NT):
                for t in range(4):
                    c = acc(t, rt); pk_ = V_PK + 2 * ((rt * 4 + t) % 8)
                    at = rt * 4 + t + 4
                    for h2 in range(2):
                        qb.append(F(lambda c=c, h2=h2: g(f"v_pk_mul_f32 {v(c + 2 * h2, 2)}, {v(c + 2 * h2, 2)}, {s(S_SC, 2)}"), 1, at))
                    for h2 in range(2):
                        qb.append(F(lambda c=c, h2=h2, pk_=pk_: g(f"v_cvt_pk_bf16_f32 {v(pk_ + h2)}, {v(c + 2 * h2)}, {v(c + 2 * h2 + 1)}"), 1, at))
                    qb.append(F(lambda t=t, rt=rt, pk_=pk_: g(f"ds_write_b64 {v(V_QW)}, {v(pk_, 2)} offset:{((t >> 1) * NT + rt) * 1024 + (t & 1) * 512}"), 1, at))
        run_step(g, mf, qm, ql, qb, drain_b=(m == 13))
    if nks > nk0:
        run(issue_upto(Z["rd"] + 3))
        run(fetch(nk0 + 3, 0, []))
    else:
        run(issue_upto(nks + 2))
    g.wait(g.last("lg"))
    barrier()
    stamp(g, o, "q")

    BF = lambda ks, rt: a(4 * (ks * NT + rt), 4)
    sacc = lambda tile, rt: V_ACC + 20 * (tile & 1) + 4 * rt
    lacc = lambda rt: V_ACC + 40 + 4 * rt
    pk = lambda rt: V_ACC + 60 + 4 * rt

    def frag_reads(base):
        return [F(lambda ks=ks, rt=rt: g(f"ds_read_b128 {BF(ks, rt)}, {v(V_F + (1 if base else 0))} offset:{(ks * NT + rt) * 1024}"), 1, 0)
                for ks in range(8) for rt in range(NT)]

    def wo_warm(i0, nb):
        t0, t1 = V_TMP + 2, V_TMP + 3
        g(f"v_add_u32 {v(t0)}, {2 * i0}, v0")
        g(f"v_bfe_u32 {v(t1)}, {v(t0)}, 1, 1")
        g(f"v_lshlrev_b32 {v(t1)}, 7, {v(t1)}")
        g(f"v_and_or_b32 {v(t1)}, {v(t0)}, 1, {v(t1)}")
        g(f"v_mul_u32_u24 {v(t1)}, 896, {v(t1)}")
        g(f"v_lshrrev_b32 {v(t0)}, 2, {v(t0)}")
        g(f"v_lshl_add_u32 {v(t0)}, {v(t0)}, 7, {v(t1)}")
        g(f"s_mul_i32 {s(S_T)}, {s(S_SH)}, {2 * 896}")
        g(f"s_mov_b64 exec, {hex((1 << (2 * nb)) - 1)}")
        g(f"buffer_load_dword {v(V_TMP + 1)}, {v(t0)}, {s(SRD_WO, 4)}, {s(S_T)} offen")
        g("s_mov_b64 exec, -1")
        g.pending.pop(("v", V_TMP + 1))
    def warm_f(step):
        k = warm_at.index(step)
        i0, nb = (0, 14) if len(warm_at) == 1 else ((0, WH), (WH, 14 - WH))[k]
        return F(lambda: wo_warm(i0, nb), 2)
    warm_at = [int(x) for x in o.wopf.split(",")]

    def softmax_fillers(tile, at):
        fl = []
        odd = tile & 1
        pi = tile >> 1
        half, idx = pgroup(pi)
        late = []
        for rt in range(NT):
            c = sacc(tile, rt)
            for i in range(4):
                fl.append(F(lambda c=c, i=i: g(f"v_exp_f32 {v(c + i)}, {v(c + i)}"), 2, at(rt)))
                if i == 1: fl += late; late = []
            for h2 in range(2):
                fl.append(F(lambda c=c, h2=h2, rt=rt: g(f"v_cvt_pk_bf16_f32 {v(pk(rt) + 2 * odd + h2)}, {v(c + 2 * h2)}, {v(c + 2 * h2 + 1)}"), 1, at(rt)))
            if odd:
                late.append(F(lambda rt=rt: g(mfma(v(lacc(rt), 4), v(V_ONE, 4), v(pk(rt), 4), pi == 0)), 3, 0))
                late.append(F(lambda rt=rt: g(f"ds_write_b128 {v(V_PW + half)}, {v(pk(rt), 4)} offset:{(idx * 4 * NT + rt) * 1024}"), 2, 0))
        return fl + late

    def tile_steps(ty, nsteps, sbase, fr, epi, plan):
        qb = []
        done = 0
        for m in range(nsteps):
            n = src[(ty, m)]
            tile, hb = m >> 1, m & 1
            g.wait(rtok[n])
            stamp(g, o, f"s{sbase + m}")
            rtm = o.rtm and hb == 1 and m > 1
            order = [(kk, rt) for rt in range(NT) for kk in range(4)] if rtm else [(kk, rt) for kk in range(4) for rt in range(NT)]
            mf = [mfma(v(sacc(tile, rt), 4), areg(n, kk), BF(4 * hb + kk, rt), hb == 0 and kk == 0) for kk, rt in order]
            qm, ql = plan(m, n)
            Z["ql"] = ql
            if m < 2:
                k = NM if m == 0 else len(fr)
                qb = fr[:k]; del fr[:k]
                run_step(g, mf, qm, ql, qb, drain_b=True, b_first=True)
            else:
                if hb == 0 and done < tile:
                    qb += epi(tile - 1, lambda rt: 2); done = tile
                nold = len(qb)
                if rtm:
                    qb += epi(tile, lambda rt: 4 * rt + 7); done = tile + 1
                nnew = len(qb) - nold
                run_step(g, mf, qm, ql, qb)
                while hb == 1 and len(qb) > nnew: qb.pop(0).fn()
        run(qb)
        if done < nsteps // 2: run(epi(nsteps // 2 - 1, lambda rt: 0))

    def plan_k(m, n):
        n1 = src[("k", m + 1)] if m < 15 else src[("v", 0)]
        wat = NM - (8 if m < 15 else 11)
        qm = issue_upto(Z["rd"] - 1 + (4 if KH and m <= max(KH) else o.kd))
        if 14 + m in warm_at: qm.insert(0, warm_f(14 + m))
        sp(qm, 1, min(o.khi, NM - 1))
        ql = [F(barrier, 0, 0)] if m == 8 else []
        if m == 0 and nks > nk0: ql += fetch(nks - 1, 2, qm)
        if n1 >= Z["rd"]: ql += fetch(n1, wat, qm)
        return qm, ql

    LOOK = 10
    fr = frag_reads(0)
    run(fr[:LOOK]); del fr[:LOOK]
    if not KH: run(fetch(nks, 0, []))
    tile_steps("k", 16, 14, fr, softmax_fillers, plan_k)

    def write_l():
        for rt in range(NT):
            g(f"ds_write_b32 {v(V_LW)}, {v(lacc(rt))} offset:{rt * 256}")
    write_l()
    run(issue_upto(src[("v", 0)] + 3))
    g.wait(g.last("lg"))
    barrier()
    stamp(g, o, "p")

    g.label(f"L_pv_{tag}")
    for rt in range(NT):
        g(f"ds_read_b128 {v(V_PK + 4 * rt, 4)}, {v(V_LR)} offset:{rt * 256}")
    run(b_reads("v", 0))
    for rt in range(NT):
        p = V_PK + 4 * rt
        g(f"v_add_f32 {v(p)}, {v(p)}, {v(p + 1)}")
        g(f"v_add_f32 {v(p + 2)}, {v(p + 2)}, {v(p + 3)}")
        g(f"v_add_f32 {v(V_LS + rt)}, {v(p)}, {v(p + 2)}")
        g(f"v_rcp_f32 {v(V_RI + rt)}, {v(V_LS + rt)}")
    g(f"v_max_f32 {v(V_TMP)}, {v(V_LS)}, {v(V_RI)}")
    for rt in range(1, NT):
        g(f"v_max3_f32 {v(V_TMP)}, {v(V_TMP)}, {v(V_LS + rt)}, {v(V_RI + rt)}")
    g(f"v_cmp_lt_f32 vcc, {f32(2.0 ** 60)}, {v(V_TMP)}")
    g.nop(2)
    g(f"s_cbranch_vccz L_pvgo_{tag}")
    g(f"s_cmp_eq_u32 {s(S_FLAG)}, 0")
    g(f"s_cbranch_scc1 L_slow_{tag}")
    g.label(f"L_pvgo_{tag}")
    qb = []
    nv = src[("v", 15)]
    assert not WH or wpos <= 11
    for m in range(16):
        n = src[("v", m)]
        B = V_B + 20 * (m & 1)
        g.wait(g.last("lg"))
        stamp(g, o, f"s{30 + m}")
        mf = [mfma(v(acc(t, rt), 4), areg(n, t), v(B + 4 * rt, 4), m == 0) for rt in range(NT) for t in range(4)]
        wat = NM - 8 - 3 - (0 if NT == 5 else 1)
        if m >= 15 - o.latew: wat = NM - 1
        ql = []
        if m == 12: ql.append(F(barrier, 0, 0))
        if m == 1:
            qb += fuse_setup(g, o, NT)
        qm = issue_upto(min(n + 4, nv) if WH and o.wlate else {12: nv, 13: nv, 14: nv + 1, 15: nv + 2}.get(m, n + 4))
        if 30 + m in warm_at: qm.insert(0, warm_f(30 + m))
        sp(qm)
        if m < 15:
            n1 = src[("v", m + 1)]
            if n1 > n + 1: sp(qm, 1, 4); wat = 3
            ql += b_reads("v", m + 1, 0) + fetch(n1, wat, qm)
        else:
            for rt in range(NT):
                for p in range(2):
                    pkr = V_PK + 4 * ((rt * 2 + p) % 4)
                    at = rt * 4 + 2 * p + 4
                    for t in (2 * p, 2 * p + 1):
                        c = acc(t, rt)
                        for h2 in range(2):
                            qb.append(F(lambda c=c, h2=h2, t=t, pkr=pkr: g(f"v_cvt_pk_bf16_f32 {v(pkr + 2 * (t & 1) + h2)}, {v(c + 2 * h2)}, {v(c + 2 * h2 + 1)}"), 1, at))
                    qb.append(F(lambda p=p, rt=rt, pkr=pkr: g(f"ds_write_b128 {v(V_OW)}, {v(pkr, 4)} offset:{(p * NT + rt) * 1024}"), 1, at))
        run_step(g, mf, qm, ql, qb, drain_b=(m == 15))
    if not (WH and o.wlate): run(issue_upto(nv + 3))
    g(f"s_lshl_b32 {s(S_T2)}, {s(S_W)}, 10")
    g(f"s_lshl_b32 {s(S_XM)}, {s(S_W)}, 12")
    g(f"v_cmp_eq_u32 vcc, 0, {v(V_EP)}")
    g.wait(None if WH else btok[nv + 1], g.last("lg"))
    barrier()
    stamp(g, o, "o")

    ends = [int(x) for x in o.fgrp.split(",")]
    def out_fillers(st, at):
        fl = []
        base = V_B + 12 * (st % 3)
        for rt in range(NT):
            c = sacc(st, rt)
            for i in range(4):
                fl.append(F(lambda c=c, i=i, rt=rt: g(f"v_mul_f32 {v(c + i)}, {v(c + i)}, {v(V_RI + rt)}"), 1, at(rt)))
            for h2 in range(2):
                fl.append(F(lambda c=c, h2=h2, rt=rt: g(f"v_cvt_pk_bf16_f32 {v(base + 2 * rt + h2)}, {v(c + 2 * h2)}, {v(c + 2 * h2 + 1)}"), 1, at(rt)))
            if rt in (1, 3):
                pidx = 2 * r + (rt >> 1)
                def stx4(rt=rt, pidx=pidx):
                    g(f"s_add_u32 {s(S_ST)}, {s(S_T2)}, {(pidx * 28 + 4 * st) * 1024}")
                    stok[st] = g(f"buffer_store_dwordx4 {v(base + 2 * (rt - 1), 4)}, {v(V_F)}, {s(SRD_P, 4)}, {s(S_ST)} offen {o.stflag}")
                fl.append(F(stx4, 1, 0))
            if rt == 4:
                def stx2():
                    g(f"s_add_u32 {s(S_ST)}, {s(S_T2)}, {(112 + 4 * (st >> 1)) * 1024 + (st & 1) * 512}")
                    stok[st] = g(f"buffer_store_dwordx2 {v(base + 8, 2)}, {v(V_L8)}, {s(SRD_P, 4)}, {s(S_ST)} offen {o.stflag}")
                fl.append(F(stx2, 1, 0))
        for e in ends:
            if e < 6 and min(e + o.flagd, 6) == st: fl.append(F(lambda e=e: flag(e), 2, 2))
        return fl

    def flag(st):
        g.wait(stok[st])
        g("s_mov_b64 exec, 1")
        g(f"buffer_atomic_swap {v(V_EP)}, off, {s(SRD_WS, 4)}, {s(S_FW)} offset:{128 * st} sc1")
        g("s_mov_b64 exec, -1")

    def plan_o(m, n):
        if m == 13: return [], []
        n1 = src[("wo", m + 1)]
        if WH:
            qm = sp(issue_upto(nv + ((1, 3)[m] if m < 2 else m + 2) if o.wlate else nv + 4 + m))
            ql = []
            if m == WH - 1: ql = [F(lambda: g.wait(btok[nv + 3]), 0, 1)]
            if m == WH + 2: ql = [F(lambda: g.wait(btok[NB - 1]), 0, 1)]
            if m >= WH - 1: ql += fetch(n1, 1, qm)
            return qm, ql
        ql = fetch(n1, 1, [], True)
        qm = sp(issue_upto(n + 4), 2, None, lambda: n in free)
        return qm, ql

    if not WH: run(fetch(nv + 1, 0, []))
    fr = frag_reads(obase)
    run(fr[:LOOK]); del fr[:LOOK]
    if not WH: run(issue_upto(nv + 4))
    g(f"s_cbranch_vccnz L_ep_{tag}")
    g.label(f"L_epok_{tag}")
    tile_steps("wo", 14, 46, fr, out_fillers, plan_o)
    stamp(g, o, "out")
    flag(6)
    stamp(g, o, "flag")

    D = V_A
    g(f"s_mov_b32 {s(S_CNT)}, 0x100000")
    g(f"s_mov_b32 {s(S_T3)}, 0xffff")
    if r == 0:
        g(f"s_cmp_eq_u32 {s(S_H)}, 15")
        g(f"s_cselect_b32 {s(S_XH)}, 0, -1")
    if o.exp == 1: g(f"s_branch L_exp1_{tag}")
    g.label(f"L_poll_{tag}")
    g(f"s_mov_b32 exec_lo, {s(S_T3)}")
    g("s_mov_b32 exec_hi, 0")
    g(f"v_mov_b32 {v(V_TMP)}, 0")
    g(f"buffer_atomic_or {v(V_TMP)}, {v(V_L4)}, {s(SRD_WS, 4)}, {s(S_FR)} offen sc0 sc1")
    g(f"s_sub_u32 {s(S_CNT)}, {s(S_CNT)}, 1")
    g(f"s_cbranch_scc1 L_k1_end")
    g.wait_all(lg=False, force=True)
    g(f"v_cmp_eq_u32 vcc, {v(V_TMP)}, {v(V_EP)}")
    g("s_mov_b32 exec_lo, -1")
    g(f"s_mov_b32 exec_hi, {s(S_XH) if r == 0 else -1}")
    g(f"s_and_b32 {s(S_T)}, vcc_lo, {s(S_T3)}")
    g(f"s_cbranch_scc0 L_poll_{tag}")
    g(f"s_xor_b32 {s(S_T3)}, {s(S_T3)}, {s(S_T)}")
    if o.dyn:
        for h in range(16):
            g(f"s_bitcmp1_b32 {s(S_T)}, {h}")
            g(f"s_cbranch_scc0 L_skip{h}_{tag}")
            g(f"s_add_u32 {s(S_ST)}, {s(S_RD)}, {h * SLAB}")
            g(f"buffer_load_dwordx4 {v(D + 4 * h, 4)}, {v(V_F)}, {s(SRD_WS, 4)}, {s(S_ST)} offen {o.rdflag}")
            g.label(f"L_skip{h}_{tag}")
        g(f"s_cmp_lg_u32 {s(S_T3)}, 0")
        g(f"s_cbranch_scc1 L_poll_{tag}")
        stamp(g, o, "poll")
        g.wait_all(lg=False, force=True)
        g.pending.clear()
    else:
        g(f"s_cbranch_scc1 L_poll_{tag}")
        stamp(g, o, "poll")
        for h in range(16):
            g(f"buffer_load_dwordx4 {v(D + 4 * h, 4)}, {v(V_F)}, {s(SRD_WS, 4)}, {s(S_RD)} offen {o.rdflag}")
            if h < 15: g(f"s_add_u32 {s(S_RD)}, {s(S_RD)}, {SLAB}")
    g(f"s_mov_b32 {s(S_T)}, 0x00003f80")
    g(f"s_mov_b32 {s(S_T2)}, 0x3f800000")
    C = V_ACC
    for h in range(16):
        for i in range(4):
            src = D + 4 * h + i
            if h == 0:
                g(f"v_lshlrev_b32 {v(C + 2 * i)}, 16, {v(src)}")
                g(f"v_and_b32 {v(C + 1 + 2 * i)}, 0xffff0000, {v(src)}")
            else:
                g(f"v_dot2c_f32_bf16 {v(C + 2 * i)}, {s(S_T)}, {v(src)}")
                g(f"v_dot2c_f32_bf16 {v(C + 2 * i + 1)}, {s(S_T2)}, {v(src)}")
    g.nop(3)
    for i in range(4):
        g(f"v_cvt_pk_bf16_f32 {v(C + 12 + i)}, {v(C + 2 * i)}, {v(C + 1 + 2 * i)}")
    g(f"buffer_store_dwordx2 {v(C + 12, 2)}, {v(V_OA)}, {s(SRD_OUT, 4)}, 0 offen {o.outflag}")
    g(f"buffer_store_dwordx2 {v(C + 14, 2)}, {v(V_OA + 1)}, {s(SRD_OUT, 4)}, 0 offen {o.outflag}")
    g.label(f"L_exp1_{tag}")
    stamp(g, o, "sum")
    if o.stamps:
        g.wait_all(force=True)
        stamp(g, o, "drain")
        g("s_waitcnt lgkmcnt(0)")
        g(f"s_lshl2_add_u32 {s(S_T)}, s2, {s(S_W)}")
        g(f"s_lshl_b32 {s(S_T)}, {s(S_T)}, 7")
        g(f"s_add_u32 {s(S_T)}, {s(S_T)}, {STAMP_OFF}")
        g(f"v_mov_b32 v1, 0")
        for i in range(len(o.slist.split(','))):
            g(f"v_mov_b32 v2, {s(S_STAMP + 2 * i)}")
            g(f"v_mov_b32 v3, {s(S_STAMP + 2 * i + 1)}")
            g(f"buffer_store_dwordx2 v[2:3], v1, {s(SRD_WS, 4)}, {s(S_T)} offen offset:{8 * i}")
            g.nop(2)
    g("s_endpgm")
    yield

    g.label(f"L_ep_{tag}")
    g.reset_state()
    g(f"s_mov_b32 {s(S_CNT)}, 0x100000")
    g(f"v_mov_b32 {v(V_TMP)}, 0")
    g.label(f"L_ep2_{tag}")
    g(f"global_load_dword {v(V_EP)}, {v(V_TMP)}, {s(S_PTR + 12, 2)} sc1")
    g.wait_all(lg=False, force=True)
    g(f"s_sub_u32 {s(S_CNT)}, {s(S_CNT)}, 1")
    g(f"s_cbranch_scc1 L_epok_{tag}")
    g(f"v_cmp_eq_u32 vcc, 0, {v(V_EP)}")
    g.nop(2)
    g(f"s_cbranch_vccnz L_ep2_{tag}")
    g(f"s_branch L_epok_{tag}")

    g.label(f"L_slow_{tag}")
    g.reset_state()
    KF = 208
    VK = V_TMP + 1
    VM = V_LS
    VP = V_TMP + 2
    g.wait_all(force=True)
    g.nop(8)
    g("s_barrier")
    g(f"s_mov_b32 {s(S_FLAG)}, 1")
    g(f"v_and_b32 {v(VK)}, 15, v0")
    g(f"v_lshlrev_b32 {v(VK)}, 9, {v(VK)}")
    g(f"v_lshrrev_b32 {v(V_TMP)}, 4, v0")
    g(f"v_lshl_add_u32 {v(VK)}, {v(V_TMP)}, 4, {v(VK)}")
    g(f"s_and_b32 {s(S_T)}, {s(S_H)}, {1 if o.ph == 2 else 0}")
    g(f"s_lshl_b32 {s(S_T)}, {s(S_T)}, 12")
    g(f"v_xor_b32 {v(VK)}, {s(S_T)}, {v(VK)}")
    g(f"v_add_u32 {v(VK)}, {BIAS}, {v(VK)}")
    for rt in range(NT):
        g(f"v_mov_b32 {v(VM + rt)}, 0xff800000")

    def slow_tile(par):
        for ks in range(8):
            g(f"buffer_load_dwordx4 {v(KF + 4 * ks, 4)}, {v(VK)}, {s(SRD_K, 4)}, {s(S_SO)} offen offset:{64 * ks}")
        for ks in range(8):
            for rt in range(NT):
                g(mfma(v(sacc(par, rt), 4), v(KF + 4 * ks, 4), BF(ks, rt), ks == 0))
    g(f"s_mov_b32 {s(S_SO)}, 0")
    g.label(f"L_slow1_{tag}")
    slow_tile(0)
    for rt in range(NT):
        c = sacc(0, rt)
        g(f"v_max3_f32 {v(VM + rt)}, {v(VM + rt)}, {v(c)}, {v(c + 1)}")
        g(f"v_max3_f32 {v(VM + rt)}, {v(VM + rt)}, {v(c + 2)}, {v(c + 3)}")
    g(f"s_add_u32 {s(S_SO)}, {s(S_SO)}, 8192")
    g(f"s_cmp_lt_u32 {s(S_SO)}, 65536")
    g(f"s_cbranch_scc1 L_slow1_{tag}")
    for rt in range(NT):
        m = VM + rt
        for op in ("v_permlane32_swap_b32", "v_permlane16_swap_b32"):
            g(f"v_mov_b32 {v(V_TMP)}, {v(m)}")
            g(f"{op} {v(V_TMP)}, {v(m)}")
            g.nop(2)
            g(f"v_max_f32 {v(m)}, {v(m)}, {v(V_TMP)}")
        g(f"ds_write_b32 {v(V_LW)}, {v(m)} offset:{2048 + rt * 256}")
    g.wait_all(force=True)
    g("s_barrier")
    for rt in range(NT):
        p = V_B + 4 * rt
        g(f"ds_read_b128 {v(p, 4)}, {v(V_LR)} offset:{2048 + rt * 256}")
        g(f"v_max3_f32 {v(p)}, {v(p)}, {v(p + 1)}, {v(p + 2)}")
        g(f"v_max_f32 {v(VM + rt)}, {v(p)}, {v(p + 3)}")
    for rt in range(NT):
        for i in range(4):
            g(f"v_mov_b32 {v(lacc(rt) + i)}, 0")
    g(f"s_mov_b32 {s(S_CNT)}, 0")
    g.label(f"L_slow2_{tag}")
    for pi in range(4):
        half, idx = pgroup(pi)
        g(f"s_cmp_eq_u32 {s(S_CNT)}, {pi}")
        g(f"s_cselect_b32 {s(S_SO)}, {ktiles[2 * pi] * 8192}, {s(S_SO)}")
        g(f"s_cselect_b32 {s(S_T)}, {half * HALF + idx * 4 * NT * 1024}, {s(S_T)}")
    g(f"s_xor_b32 {s(S_SO)}, {s(S_SO)}, {s(S_KX)}")
    g(f"v_add_u32 {v(VP)}, {s(S_T)}, {v(V_PW)}")
    for par in range(2):
        slow_tile(par)
        if par == 0:
            g(f"s_xor_b32 {s(S_SO)}, {s(S_SO)}, 8192")
        for rt in range(NT):
            c = sacc(par, rt)
            for i in range(4):
                g(f"v_sub_f32 {v(c + i)}, {v(c + i)}, {v(VM + rt)}")
            for i in range(4):
                g(f"v_exp_f32 {v(c + i)}, {v(c + i)}")
            for h2 in range(2):
                g(f"v_cvt_pk_bf16_f32 {v(pk(rt) + 2 * par + h2)}, {v(c + 2 * h2)}, {v(c + 2 * h2 + 1)}")
    for rt in range(NT):
        g(f"ds_write_b128 {v(VP)}, {v(pk(rt), 4)} offset:{rt * 1024}")
        g(mfma(v(lacc(rt), 4), v(V_ONE, 4), v(pk(rt), 4), False))
    g(f"s_add_u32 {s(S_CNT)}, {s(S_CNT)}, 1")
    g(f"s_cmp_lt_u32 {s(S_CNT)}, 4")
    g.nop(8)
    g(f"s_cbranch_scc1 L_slow2_{tag}")
    write_l()
    g.wait_all(force=True)
    g.nop(8)
    g("s_barrier")
    g(f"s_branch L_pv_{tag}")


HEAD = """; Fused MHA block: out = softmax((x wq) K^T / 16) V wo   (B=8, Sq=144, D=448, H=16, Sk=512, Dh=256, bf16)
; kernarg: x@0 k_cache@8 v_cache@16 wq@24 wo@32 out@40 debug@48 ws@56
; One workgroup per (batch, head, row half): q-projection, attention and that head's share of the output
; projection; the per-head partial outputs are handed over through ws and summed by the same workgroups.
"""


KN = "standalone__mha_block_cached__near_ridge_kernel"


def build(o):
    g = Gen()
    g.raw(HEAD.rstrip())
    g.raw(f"; @launch grid=(256,1,1) block=(256,1,1) lds={LDS_BYTES}")
    g.raw(f'.amdgcn_target "amdgcn-amd-amdhsa--gfx950"\n.text\n.globl {KN}\n.p2align 8\n.type {KN},@function')
    g.label(KN)
    prologue(g, o)
    g(f"s_cmp_eq_u32 {s(S_R)}, 1")
    g("s_cbranch_scc1 L_light")
    snap = g.snapshot()
    bh = body(g, o, 5, "h"); next(bh)
    g.raw(".p2align 6")
    g.label("L_light")
    g.restore(snap)
    bl = body(g, o, 4, "l"); next(bl)
    g.label("L_main_end")
    for b in (bh, bl):
        for _ in b: pass
    g.label("L_k1_end")
    g("s_endpgm")
    g.raw(kd(KN, 512, 256))
    return g


if __name__ == "__main__":
    o = Opt()
    out = sys.argv[1]
    for kv in sys.argv[2:]:
        k, _, val = kv.partition("=")
        cur = getattr(o, k)
        if isinstance(cur, bool): val = val in ("1", "true", "True")
        elif isinstance(cur, int): val = int(val)
        else: val = val.replace("+", " ")
        setattr(o, k, val)
    g = build(o)
    open(out, "w").write(g.text())
    print(out, "instrs", g.ninstr, "nops", g.nnops, file=sys.stderr)
```

```python
import sys, struct, math
from asmgen import Gen, v, a, s, kd, Tok

WS = 268435456
STAMP_OFF = WS - (4 << 20)
SLAB = 129 * 1024
FLAG_OFF = 17 << 20
EP_OFF = FLAG_OFF + (1 << 20)
HALF = 49152
BIAS = 3072
LDS_X = 40960
LDS_L = 90112
LDS_RING = 94208
LDS_BYTES = LDS_RING + 4 * 16384

def f32(x): return "0x%08x" % struct.unpack("<I", struct.pack("<f", x))[0]

S_W = 3
SRD_X, SRD_K, SRD_V, SRD_WQ, SRD_WO, SRD_P = 4, 8, 12, 16, 20, 24
S_RING = 28
S_B, S_H, S_R = 32, 33, 34
S_T = 35
S_PTR = 36
S_SO = 36
S_XM = 37
S_XM3 = 38
S_FLAG = 39
S_FW = 40
S_FR = 41
S_RD = 42
S_XH = 43
S_PF = 44
SRD_WS, SRD_OUT = SRD_X, SRD_WQ
S_XO = 52
S_WQO = 59
S_SH = 73
S_SC = 74
S_T2 = 76
S_T3 = 77
S_ST = 78
S_CNT = 79
S_KX = 1
S_VX = 0
S_STAMP = 80

V_T = 1
V_WO = 5
V_NR = 6
V_NX = 8
V_F = 10
V_QW = 12
V_LW = 13
V_LR = 14
V_PW = 15
V_OW = 17
V_DWQ = 18
V_DK = 22
V_DV = 26
V_DWO = 30
V_DX = 34
V_L8 = 37
V_TMP = 38
V_ONE = 44
V_ACC = 48
V_A = 128
V_B = 160
V_PK = 200
V_RI = 240
V_LS = 245
V_EP = 250
V_OA = 251
V_PO = 253
V_L4 = 254
V_WO2 = 255
V_H6 = 224
A_HOLD = 160


class Opt:
    stamps = False
    cyc = False
    slist = "start,first,q,p,o,out,flag,poll,sum,drain"
    kflag = ""
    knt = 99
    vflag = ""
    wqflag = ""
    woflag = ""
    xflag = ""
    stflag = "sc1"
    rdflag = "sc1"
    outflag = "sc1"
    codepf = True
    wopf = "25,38"
    flagd = 1
    xs = "0:0,1:123,5:4,6:5,7:6"
    alt = False
    fgrp = "3,6"
    dyn = False
    warmf = True
    exp = 0
    tlb = False
    khold = 0
    whold = 7
    wpos = "2,8"
    kd = 3
    cpf = "18,34"
    kh = "014589"
    rtm = True
    wlate = False
    wafter = True
    x_hit = False
    ph = 2
    latew = 2
    spread = True
    pace1 = True
    pace2 = True
    pace3 = True
    khi = 8
    x_nobar = False
    x_nodma = False
    x_nost = False
    x_noepi = False


def stamp(g, o, name):
    if o.stamps:
        names = o.slist.split(",")
        if name in names:
            i = names.index(name)
            g(f"{'s_memtime' if o.cyc else 's_memrealtime'} {s(S_STAMP + 2 * i, 2)}")


def srd(g, dst, ptr, off, total, bias=0):
    if bias:
        g(f"s_sub_u32 {s(ptr)}, {s(ptr)}, {bias}")
        g(f"s_subb_u32 {s(ptr + 1)}, {s(ptr + 1)}, 0")
    g(f"s_add_u32 {s(dst)}, {s(ptr)}, {s(off)}")
    g(f"s_addc_u32 {s(dst + 1)}, {s(ptr + 1)}, 0")
    g(f"s_sub_u32 {s(dst + 2)}, {total + bias}, {s(off)}")
    g(f"s_mov_b32 {s(dst + 3)}, 0x20000")


def prologue(g, o):
    stamp(g, o, "start")
    g("s_cmp_ge_u32 s2, 256")
    g("s_cbranch_scc1 L_k1_end")
    g(f"s_load_dwordx16 {s(S_PTR, 16)}, s[0:1], 0")
    g("v_lshrrev_b32 v1, 6, v0")
    g("v_and_b32 v0, 63, v0")
    g(f"v_readfirstlane_b32 {s(S_W)}, v1")
    q, pos, t0, t1, t2, t3 = range(V_TMP, V_TMP + 6)
    g(f"v_lshrrev_b32 {v(q)}, 3, v0")
    g(f"v_and_b32 {v(pos)}, 7, v0")
    g(f"s_bfe_u32 {s(S_R)}, s2, 0x10003")
    g(f"s_bfe_u32 {s(S_B)}, s2, 0x30004")
    g(f"s_lshr_b32 {s(S_T2)}, s2, 7")
    g(f"s_and_b32 {s(S_H)}, s2, 7")
    g(f"s_lshl1_add_u32 {s(S_H)}, {s(S_H)}, {s(S_T2)}")
    g(f"s_bfe_u32 {s(S_SH)}, s2, 0x40003")
    g(f"s_mul_i32 {s(S_T2)}, {s(S_T2)}, 3")
    g(f"s_add_u32 {s(S_T)}, {s(S_B)}, {s(S_T2)}")
    g(f"s_cmp_ge_u32 {s(S_T)}, 7")
    g(f"s_cselect_b32 {s(S_T2)}, 7, 0")
    g(f"s_sub_u32 {s(S_CNT)}, {s(S_T)}, {s(S_T2)}")
    g(f"s_lshl_b32 {s(S_XO)}, {s(S_CNT)}, 7")
    g(f"s_lshl1_add_u32 {s(S_T)}, {s(S_CNT)}, {s(S_R)}")
    g(f"s_lshl_b32 {s(S_WQO)}, {s(S_T)}, 18")
    g(f"s_lshl_b32 {s(S_T)}, {s(S_W)}, 14")
    g(f"s_add_u32 {s(S_RING)}, {s(S_T)}, {LDS_RING}")
    g(f"v_and_b32 {v(t3)}, 6, {v(q)}")
    g(f"v_xor_b32 {v(t3)}, {v(t3)}, {v(pos)}")
    g(f"v_lshlrev_b32 {v(t3)}, 4, {v(t3)}")
    g(f"v_and_b32 {v(t1)}, 4, {v(q)}")
    g(f"v_add_u32 {v(t1)}, {v(t1)}, {v(q)}")
    g(f"v_lshl_add_u32 {v(V_DWQ)}, {v(t1)}, 13, {v(t3)}")
    for j, kb in enumerate([0, 16, 4, 20]):
        if j: g(f"v_add_u32 {v(V_DWQ + j)}, {kb * 8192 - 1024 * j}, {v(V_DWQ)}")
    g(f"v_mul_u32_u24 {v(t1)}, 896, {v(q)}")
    g(f"v_lshrrev_b32 {v(t0)}, 1, {v(q)}")
    g(f"v_xor_b32 {v(t0)}, {v(t0)}, {v(pos)}")
    g(f"v_lshlrev_b32 {v(t0)}, 4, {v(t0)}")
    g(f"v_xor_b32 {v(t2)}, 64, {v(t0)}")
    g(f"s_mul_i32 {s(S_T)}, {s(S_W)}, {16 * 896}")
    g(f"v_add3_u32 {v(V_DX)}, {v(t1)}, {v(t0)}, {s(S_T)}")
    g(f"s_add_u32 {s(S_T)}, {s(S_T)}, {8 * 896 - 1024}")
    g(f"v_add3_u32 {v(V_DX + 1)}, {v(t1)}, {v(t2)}, {s(S_T)}")
    g(f"s_mul_i32 {s(S_T)}, {s(S_B)}, {144 * 896}")
    g(f"s_mul_i32 {s(S_T2)}, {s(S_R)}, {80 * 896}")
    g(f"s_add_u32 {s(S_T)}, {s(S_T)}, {s(S_T2)}")
    g(f"s_lshl2_add_u32 {s(S_T2)}, {s(S_H)}, {s(S_W)}")
    g(f"s_lshl_b32 {s(S_T2)}, {s(S_T2)}, 7")
    g(f"s_lshl_b32 m0, {s(S_W)}, 11")
    g("s_waitcnt lgkmcnt(0)")
    srd(g, SRD_X, S_PTR, S_T, 8 * 144 * 896)
    stamp(g, o, "pro")
    g(f"buffer_load_dwordx4 {v(V_DX)}, {s(SRD_X, 4)}, {s(S_XO)} offen {o.xflag} lds")
    g(f"buffer_load_dwordx4 {v(V_DX + 1)}, {s(SRD_X, 4)}, {s(S_XO)} offen offset:1024 {o.xflag} lds")
    g(f"s_mov_b32 m0, {s(S_RING)}")
    srd(g, SRD_WQ, S_PTR + 6, S_T2, 448 * 8192)
    for j in range(4):
        g(f"buffer_load_dwordx4 {v(V_DWQ + j)}, {s(SRD_WQ, 4)}, {s(S_WQO)} offen offset:{1024 * j} {o.wqflag} lds")
    if o.codepf:
        g(f"s_getpc_b64 {s(S_SC, 2)}")
        g(f"s_lshl2_add_u32 {s(S_T)}, {s(S_SH)}, {s(S_W)}")
        g(f"v_lshl_add_u32 v2, v0, 6, {s(S_T)}")
        g(f"v_lshlrev_b32 v2, 7, v2")
        g(f"v_min_u32 v2, L_main_end-{KN}-512, v2")
        g("s_mov_b64 exec, 0x1ff")
        g(f"global_load_dword {v(V_RI)}, v2, {s(S_SC, 2)}")
        g("s_mov_b64 exec, -1")
    g(f"s_lshl_b32 {s(S_T)}, {s(S_W)}, 5")
    g(f"v_xor_b32 {v(V_DX + 2)}, {s(S_T)}, {v(t0)}")
    g(f"s_mul_i32 {s(S_T)}, {s(S_W)}, {4 * 896}")
    g(f"s_add_u32 {s(S_T)}, {s(S_T)}, {64 * 896}")
    g(f"v_add3_u32 {v(V_DX + 2)}, {v(t1)}, {v(V_DX + 2)}, {s(S_T)}")
    g(f"s_lshl_b32 {s(S_XM)}, {s(S_W)}, 11")


def setup2(g, o):
    q, pos, t0, t1, t2, t3 = range(V_TMP, V_TMP + 6)
    g(f"s_xor_b32 {s(S_WQO + 1)}, {s(S_WQO)}, 0x40000")
    for it in range(1, 7):
        g(f"s_add_u32 {s(S_CNT)}, {s(S_CNT)}, 1")
        g(f"s_cmp_eq_u32 {s(S_CNT)}, 7")
        g(f"s_cselect_b32 {s(S_CNT)}, 0, {s(S_CNT)}")
        g(f"s_lshl_b32 {s(S_XO + it)}, {s(S_CNT)}, 7")
        g(f"s_lshl1_add_u32 {s(S_T)}, {s(S_CNT)}, {s(S_R)}")
        g(f"s_lshl_b32 {s(S_WQO + 2 * it)}, {s(S_T)}, 18")
        g(f"s_xor_b32 {s(S_WQO + 2 * it + 1)}, {s(S_WQO + 2 * it)}, 0x40000")
    for i in range(1, 4):
        g(f"s_add_u32 {s(S_RING + i)}, {s(S_RING)}, {4096 * i}")
    g(f"s_lshl_b32 {s(S_KX)}, {s(S_B)}, 13" if o.ph else f"s_mov_b32 {s(S_KX)}, 0")
    g(f"s_and_b32 {s(S_VX)}, {s(S_KX)}, 0xc000")
    g(f"s_and_b32 {s(S_T2)}, {s(S_H)}, {1 if o.ph == 2 else 0}")
    g(f"s_lshl_b32 {s(S_T2)}, {s(S_T2)}, 12")
    g(f"s_and_b32 {s(S_T3)}, {s(S_KX)}, 0x2000")
    g(f"s_or_b32 {s(S_T3)}, {s(S_T3)}, {s(S_T2)}")
    g(f"v_add_u32 {v(V_DWO)}, {v(t1)}, {v(t3)}")
    g(f"v_lshl_add_u32 {v(t3)}, {v(q)}, 9, {v(t3)}")
    for j in range(4):
        g(f"s_xor_b32 {s(S_T)}, {s(S_T3)}, {4096 * j}")
        g(f"s_add_u32 {s(S_T)}, {s(S_T)}, {BIAS - 1024 * j}")
        g(f"v_add_u32 {v(V_DV + j)}, {s(S_T)}, {v(t3)}")
    g(f"v_lshl_add_u32 {v(t0)}, {v(q)}, 9, {v(t0)}")
    g(f"v_lshl_add_u32 {v(t2)}, {v(q)}, 9, {v(t2)}")
    for j in range(4):
        g(f"s_xor_b32 {s(S_T)}, {s(S_T2)}, {4096 * (j & 1)}")
        g(f"s_add_u32 {s(S_T)}, {s(S_T)}, {BIAS + 128 * (j >> 1) - 1024 * j}")
        g(f"v_add_u32 {v(V_DK + j)}, {s(S_T)}, {v(t2 if j & 1 else t0)}")
    g(f"s_lshl4_add_u32 {s(S_T3)}, {s(S_B)}, {s(S_H)}")
    g(f"s_lshl_b32 {s(S_T)}, {s(S_T3)}, 18" if not o.x_hit else f"s_mov_b32 {s(S_T)}, 0")
    g(f"s_lshl_b32 {s(S_T2)}, {s(S_W)}, 7")
    g(f"s_add_u32 {s(S_T2)}, {s(S_T)}, {s(S_T2)}")
    srd(g, SRD_V, S_PTR + 4, S_T2, 1 << 25, BIAS)
    g(f"s_lshl_b32 {s(S_T2)}, {s(S_W)}, 16")
    g(f"s_add_u32 {s(S_T)}, {s(S_T)}, {s(S_T2)}")
    srd(g, SRD_K, S_PTR + 2, S_T, 1 << 25, BIAS)
    g(f"s_lshl3_add_u32 {s(S_T)}, {s(S_H)}, {s(S_W)}")
    g(f"s_mul_i32 {s(S_T)}, {s(S_T)}, {32 * 896}")
    srd(g, SRD_WO, S_PTR + 8, S_T, 4096 * 896)
    g(f"s_mul_i32 {s(S_T)}, {s(S_T3)}, {SLAB}")
    srd(g, SRD_P, S_PTR + 14, S_T, WS)
    g(f"s_lshl_b32 {s(S_XM3)}, {s(S_W)}, 9")
    g(f"s_add_u32 {s(S_XM3)}, {s(S_XM3)}, 8192")


def late_setup(g, NT, obase):
    t0, t1, t2, gg, row = V_TMP, V_TMP + 1, V_TMP + 2, V_TMP + 3, V_TMP + 4
    for j in range(1, 4):
        g(f"v_add_u32 {v(V_DWO + j)}, {(8 * 896 - 1024) * j}, {v(V_DWO)}")
    g(f"v_lshrrev_b32 {v(gg)}, 4, v0")
    g(f"v_and_b32 {v(row)}, 15, v0")
    g(f"v_lshrrev_b32 {v(t0)}, 2, v0")
    g(f"v_and_b32 {v(t1)}, 6, {v(t0)}")
    g(f"v_bfe_u32 {v(t2)}, v0, 1, 1")
    g(f"v_or_b32 {v(t1)}, {v(t1)}, {v(t2)}")
    g(f"v_lshlrev_b32 {v(t1)}, 4, {v(t1)}")
    g(f"v_lshl_add_u32 {v(t1)}, {v(t0)}, 7, {v(t1)}")
    g(f"v_and_b32 {v(t2)}, 1, v0")
    g(f"v_lshl_add_u32 {v(t1)}, {v(t2)}, 3, {v(t1)}")
    for t in range(4):
        g(f"v_xor_b32 {v(t2)}, {32 * t}, {v(t1)}")
        g(f"v_add_u32 {v(V_T + t)}, {s(S_RING)}, {v(t2)}")
    g(f"s_lshl_b32 {s(S_T)}, {s(S_W)}, 5")
    g(f"v_xor_b32 {v(t2)}, {s(S_T)}, {v(t1)}")
    g(f"v_add_u32 {v(V_WO)}, {LDS_RING}, {v(t2)}")
    g(f"v_add_u32 {v(V_WO2)}, {LDS_X}, {v(t2)}")
    g(f"v_lshrrev_b32 {v(t0)}, 1, {v(row)}")
    g(f"v_xor_b32 {v(t0)}, {v(t0)}, {v(gg)}")
    g(f"v_lshlrev_b32 {v(t0)}, 4, {v(t0)}")
    g(f"v_lshl_add_u32 {v(V_NX)}, {v(row)}, 7, {v(t0)}")
    g(f"v_xor_b32 {v(V_NX + 1)}, 64, {v(V_NX)}")
    g(f"v_add_u32 {v(V_NR)}, {s(S_RING)}, {v(V_NX)}")
    g(f"v_add_u32 {v(V_NR + 1)}, {s(S_RING)}, {v(V_NX + 1)}")
    g(f"v_lshlrev_b32 {v(V_F)}, 4, v0")
    g(f"v_add_u32 {v(V_F + 1)}, {HALF}, {v(V_F)}")
    g(f"v_lshlrev_b32 {v(V_L8)}, 3, v0")
    g(f"v_lshrrev_b32 {v(t0)}, 1, {v(gg)}")
    g(f"v_lshl_add_u32 {v(t0)}, {v(t0)}, 4, {v(row)}")
    g(f"v_lshlrev_b32 {v(t0)}, 4, {v(t0)}")
    g(f"v_and_b32 {v(t1)}, 1, {v(gg)}")
    g(f"v_lshl_add_u32 {v(t0)}, {v(t1)}, 3, {v(t0)}")
    g(f"s_mul_i32 {s(S_T)}, {s(S_W)}, {2 * NT * 1024}")
    g(f"v_add_u32 {v(V_QW)}, {s(S_T)}, {v(t0)}")
    g(f"v_add_u32 {v(V_OW)}, {s(S_T)}, {v(V_F + (1 if obase else 0))}")
    g(f"s_mul_i32 {s(S_T)}, {s(S_W)}, {NT * 1024}")
    g(f"v_add_u32 {v(V_PW)}, {s(S_T)}, {v(V_F)}")
    g(f"v_add_u32 {v(V_PW + 1)}, {s(S_T)}, {v(V_F + 1)}")
    g(f"v_lshlrev_b32 {v(t0)}, 4, {v(row)}")
    g(f"v_add_u32 {v(V_LR)}, {LDS_L}, {v(t0)}")
    g(f"s_lshl_b32 {s(S_T)}, {s(S_W)}, 2")
    g(f"v_add_u32 {v(V_LW)}, {s(S_T)}, {v(V_LR)}")
    for i in range(4):
        g(f"v_mov_b32 {v(V_ONE + i)}, 0x3f803f80")
    sc = f32(math.log2(math.e) / 16.0)
    g(f"s_mov_b32 {s(S_SC)}, {sc}")
    g(f"s_mov_b32 {s(S_SC + 1)}, {sc}")
    g(f"s_mov_b32 {s(S_FLAG)}, 0")


def task_tables(r):
    if r == 1:
        t = [(p, s_) for s_ in range(3) for p in range(4)] + [(4, 1), (2, 3), (3, 3), (4, 3)]
    else:
        t = [(0, 3), (1, 3)] + [(p, s_) for s_ in (4, 5, 6) for p in range(4)] + [(4, 5), (4, 6)]
    kt = sum(k << (4 * i) for i, (k, _) in enumerate(t))
    st_ = sum(x << (4 * i) for i, (_, x) in enumerate(t))
    return kt, st_


def fuse_setup(g, o, NT):
    r = 0 if NT == 5 else 1
    kt, stt = task_tables(r)
    ends = [int(x) for x in o.fgrp.split(",")]
    ft = sum(min(e for e in ends if e >= x) << (4 * x) for x in range(7))
    K, ST, T, T2 = S_XO, S_XO + 1, S_XO + 2, S_XO + 3
    P = S_XO + 4
    t0, t1 = V_TMP + 4, V_TMP + 5
    L = []
    L += [f"s_mov_b32 {s(SRD_WS)}, {s(S_PTR + 14)}", f"s_mov_b32 {s(SRD_WS + 1)}, {s(S_PTR + 15)}",
          f"s_mov_b32 {s(SRD_WS + 2)}, {WS}", f"s_mov_b32 {s(SRD_WS + 3)}, 0x20000",
          f"s_mov_b32 {s(SRD_OUT)}, {s(S_PTR + 10)}", f"s_mov_b32 {s(SRD_OUT + 1)}, {s(S_PTR + 11)}",
          f"s_mov_b32 {s(SRD_OUT + 2)}, {8 * 144 * 896}", f"s_mov_b32 {s(SRD_OUT + 3)}, 0x20000",
          f"v_mov_b32 {v(V_PO)}, 0",
          f"global_load_dword {v(V_EP)}, {v(V_PO)}, {s(S_PTR + 12, 2)} sc1",
          f"s_lshl_b32 {s(T)}, {s(S_H)}, 2",
          f"s_mov_b32 {s(P)}, {kt & 0xffffffff}", f"s_mov_b32 {s(P + 1)}, {kt >> 32}",
          f"s_lshr_b64 {s(P, 2)}, {s(P, 2)}, {s(T)}", f"s_and_b32 {s(K)}, {s(P)}, 15",
          f"s_mov_b32 {s(P)}, {stt & 0xffffffff}", f"s_mov_b32 {s(P + 1)}, {stt >> 32}",
          f"s_lshr_b64 {s(P, 2)}, {s(P, 2)}, {s(T)}", f"s_and_b32 {s(ST)}, {s(P)}, 15",
          f"s_lshl_b32 {s(T2)}, {s(S_B)}, 3", f"s_add_u32 {s(T2)}, {s(T2)}, {s(S_W)}", f"s_mul_i32 {s(T2)}, {s(T2)}, 896",
          f"s_add_u32 {s(S_FW)}, {s(T2)}, {FLAG_OFF + r * 4 * 896}", f"s_add_u32 {s(S_FW)}, {s(S_FW)}, {s(T)}",
          f"s_lshl_b32 {s(T)}, {s(ST)}, 2", f"s_lshr_b32 {s(P)}, {ft}, {s(T)}", f"s_and_b32 {s(P)}, {s(P)}, 15",
          f"s_bfe_u32 {s(T)}, {s(K)}, 0x10001", f"s_mul_i32 {s(T)}, {s(T)}, {4 * 7}", f"s_add_u32 {s(T)}, {s(T)}, {s(P)}",
          f"s_lshl_b32 {s(T)}, {s(T)}, 7", f"s_add_u32 {s(T)}, {s(T)}, {s(T2)}", f"s_add_u32 {s(S_FR)}, {s(T)}, {FLAG_OFF}",
          f"s_lshr_b32 {s(T)}, {s(K)}, 2", f"s_lshr_b32 {s(T)}, {s(ST)}, {s(T)}", f"s_lshl_b32 {s(T)}, {s(T)}, 2",
          f"s_mul_i32 {s(T2)}, {s(K)}, 28", f"s_add_u32 {s(T)}, {s(T)}, {s(T2)}", f"s_add_u32 {s(T)}, {s(T)}, {s(S_W)}",
          f"s_lshl_b32 {s(T)}, {s(T)}, 10", f"s_mul_i32 {s(T2)}, {s(S_B)}, {16 * SLAB}", f"s_add_u32 {s(S_RD)}, {s(T)}, {s(T2)}",
          f"s_lshl_b32 {s(T)}, {s(K)}, 3", f"s_mov_b32 {s(P)}, {0 | 32 << 8 | 80 << 16 | 112 << 24}", f"s_mov_b32 {s(P + 1)}, 64",
          f"s_lshr_b64 {s(P, 2)}, {s(P, 2)}, {s(T)}", f"s_and_b32 {s(T)}, {s(P)}, 255",
          f"s_mul_i32 {s(T2)}, {s(S_B)}, 144", f"s_add_u32 {s(T)}, {s(T)}, {s(T2)}", f"s_mul_i32 {s(T)}, {s(T)}, 896",
          f"s_lshr_b32 {s(T2)}, {s(K)}, 2", f"s_andn2_b32 {s(T2)}, {s(ST)}, {s(T2)}", f"s_lshl_b32 {s(T2)}, {s(T2)}, 2",
          f"s_add_u32 {s(T2)}, {s(T2)}, {s(S_W)}", f"s_lshl_b32 {s(T2)}, {s(T2)}, 5", f"s_add_u32 {s(T)}, {s(T)}, {s(T2)}",
          f"v_and_b32 {v(t0)}, 15, v0", f"v_mul_u32_u24 {v(t0)}, 896, {v(t0)}", f"v_lshrrev_b32 {v(t1)}, 4, v0",
          f"v_lshl_add_u32 {v(V_OA)}, {v(t1)}, 3, {v(t0)}",
          f"v_and_b32 {v(t0)}, 7, v0", f"v_mul_u32_u24 {v(t0)}, {2 * 896}, {v(t0)}", f"v_bfe_u32 {v(t1)}, v0, 3, 2",
          f"v_lshl_add_u32 {v(t0)}, {v(t1)}, 3, {v(t0)}", f"v_lshrrev_b32 {v(t1)}, 5, v0",
          f"v_lshl_add_u32 {v(t0)}, {v(t1)}, 7, {v(t0)}"]
    fl = [F(lambda t=t: g(t), 1, 0) for t in L]
    def sel():
        g(f"s_cmp_eq_u32 {s(K)}, 4")
        g(f"s_cselect_b64 vcc, -1, 0")
        g(f"s_cselect_b32 {s(T2)}, 896, {16 * 896}".replace(f", {16 * 896}", f", {s(P)}"))
    fl.append(F(lambda: g(f"s_mov_b32 {s(P)}, {16 * 896}"), 1, 0))
    fl.append(F(sel, 2, 0))
    L2 = [f"v_cndmask_b32 {v(V_OA)}, {v(V_OA)}, {v(t0)}, vcc",
          f"v_add_u32 {v(V_OA)}, {s(T)}, {v(V_OA)}", f"v_add_u32 {v(V_OA + 1)}, {s(T2)}, {v(V_OA)}",

          f"v_lshlrev_b32 {v(V_L4)}, 2, v0"]
    fl += [F(lambda t=t: g(t), 1, 0) for t in L2]
    if o.warmf:
        def warm():
            lab = f"L_nowarm_{NT}"
            g(f"s_cmp_lg_u32 {s(S_H)}, 0")
            g(f"s_cbranch_scc1 {lab}")
            g("s_mov_b64 exec, 1")
            for e in ends:
                g.raw(f"    buffer_atomic_or {v(V_PO)}, off, {s(SRD_WS, 4)}, {s(S_FW)} offset:{128 * e} sc1")
            g("s_mov_b64 exec, -1")
            g.label(lab)
        fl.append(F(warm, 2, 0))
    return fl


class F:
    def __init__(self, fn, cost=1, at=0, ok=None):
        self.fn, self.cost, self.at, self.ok = fn, cost, at, ok

    def ready(self, i):
        return self.at <= i and (self.ok is None or self.ok())


def mfma(d, A, B, first):
    return f"v_mfma_f32_16x16x32_bf16 {d}, {A}, {B}, {'0' if first else d}"


def run_step(g, mf, qm, ql, qb, drain_b=False, b_first=False):
    for i, m in enumerate(mf):
        g(m)
        budget, sal, took = 2, 1, 0
        pend_b = b_first
        while True:
            hit = False
            for q in (ql, qm, qb):
                if q and q[0].ready(i) and q[0].cost <= 0 and (q[0].cost < 0 or sal > 0 or budget > 0):
                    f = q.pop(0)
                    if f.cost == 0:
                        if sal > 0: sal -= 1
                        else: budget -= 1
                    f.fn(); hit = True
                    break
            if hit: continue
            sal = 0
            b_ready = bool(qb) and qb[0].ready(i)
            if pend_b and b_ready:
                f = qb.pop(0); budget -= f.cost; f.fn(); pend_b = False
                continue
            if qm and qm[0].ready(i) and 0 < qm[0].cost <= budget:
                f = qm.pop(0); budget -= f.cost; f.fn()
                continue
            if ql and ql[0].ready(i) and 0 < ql[0].cost <= budget and (took == 0 or not b_ready or qb[0].cost > budget):
                f = ql.pop(0); budget -= f.cost; took += 1; f.fn()
                continue
            if b_ready and qb[0].cost > 0 and (budget >= qb[0].cost or (qb[0].cost > 2 and budget == 2)):
                f = qb.pop(0); budget -= f.cost; f.fn()
                if f.cost > 2: budget = 2
                continue
            break
    while ql or qm:
        if qm and (qm[0].ok is None or qm[0].ok()): qm.pop(0).fn()
        else:
            assert ql[0].ok is None or ql[0].ok()
            ql.pop(0).fn()
    for f in qb:
        f.at = 0
    if drain_b:
        while qb:
            qb.pop(0).fn()


def spread(fl, lo, hi, ok=None):
    nv = sum(1 for f in fl if f.cost > 0)
    k = 0
    for f in fl:
        p = lo + (k * (hi - lo + 1)) // max(nv, 1)
        if f.cost > 0:
            f.at = p; f.ok = ok; k += 1
        else:
            f.at = max(p - 1, 0)
    return fl


def body(g, o, NT, tag):
    r = 0 if NT == 5 else 1
    NM = 4 * NT
    def pgroup(pi):
        return (1 - (pi >> 1), pi & 1)
    pv = []
    for p in (2, 3, 0, 1):
        half, idx = pgroup(p)
        for w2 in range(4):
            pv.append((half, idx * 4 + w2, 128 * w2 + 32 * p))
    obase = 0
    ktiles = list(range(8))

    KH = [int(c, 16) for c in o.kh] if o.khold else []
    first = o.khold in (1, 2) and (o.khold == 1) == (NT == 4)
    WH = o.whold
    wpos = int(o.wpos.split(",")[r])
    seq = [("wq", 0)] + ([("k", i) for i in KH] if first else []) + [("wq", n) for n in range(1, 14)]
    seq += ([] if first else [("k", i) for i in KH]) + [("k", i) for i in range(16) if i not in KH]
    for i in range(16):
        seq.append(("v", i))
        if i == wpos: seq += [("wo", j) for j in range(WH)]
    seq += [("wo", j) for j in range(WH, 14)]
    blocks = []
    nring = npar = 0
    for ty, i in seq:
        b = dict(ty=ty, i=i, hold=None, coop=(ty == "wo"), prev=None)
        if ty == "k" and i in KH: b["hold"] = KH.index(i)
        if ty == "wo" and i < WH: b["hold"] = i
        if ty == "wo" and WH and i >= WH + 4:
            b["slot"] = ("x", i - WH - 4)
            assert i - WH - 4 < 3
        else:
            b["slot"] = ("r", nring & 3)
            if nring >= 4: b["prev"] = len(blocks) - 4
            nring += 1
        if b["hold"] is None:
            b["par"] = npar & 1; npar += 1
        blocks.append(b)
    NB = len(blocks)
    src = {(b["ty"], b["i"]): n for n, b in enumerate(blocks)}
    xs = {int(e.split(":")[0]): [int(c) for c in e.split(":")[1]] for e in o.xs.split(",")}
    xat = {it: src[("wq", n)] for n, its in xs.items() for it in its}
    btok, rtok = [None] * NB, [None] * NB
    seen, free = set(), set()
    Z = {"dma": 1, "rd": 0}
    stok = [None] * 7

    def barrier():
        g("s_barrier")
        for n in range(NB):
            if btok[n] is not None and g.done["vm"] >= btok[n].n: seen.add(n)
            if rtok[n] is not None and g.done["lg"] >= rtok[n].n: free.add(n)

    def x_fillers(it):
        fl = []
        if it:
            fl.append(F(lambda: g(f"s_add_u32 m0, {s(S_XM)}, {it * NT * 2048}"), 0))
            fl.append(F(lambda: g(f"buffer_load_dwordx4 {v(V_DX)}, {s(SRD_X, 4)}, {s(S_XO + it)} offen {o.xflag} lds")))
            fl.append(F(lambda: g(f"buffer_load_dwordx4 {v(V_DX + 1)}, {s(SRD_X, 4)}, {s(S_XO + it)} offen offset:1024 {o.xflag} lds")))
        if NT == 5:
            if it: fl.append(F(lambda: g(f"s_add_u32 m0, {s(S_XM3)}, {it * NT * 2048}"), 0))
            def third():
                g("s_mov_b32 exec_hi, 0")
                g(f"buffer_load_dwordx4 {v(V_DX + 2)}, {s(SRD_X, 4)}, {s(S_XO + it)} offen {o.xflag} lds")
                g("s_mov_b32 exec_hi, -1")
            fl.append(F(third, 2))
        return fl

    def dma_fillers(n, with_x=True):
        b = blocks[n]; ty, i = b["ty"], b["i"]
        fl = []
        def S(txt): fl.append(F(lambda: g(txt), 0))
        def D(txt, j):
            def fn():
                if j == 0 and b["prev"] is not None:
                    p = b["prev"]
                    assert rtok[p] is not None, (n, p)
                    g.wait(rtok[p])
                    assert not blocks[p]["coop"] or p in free, (n, p)
                if j == 0: assert n == 0 or btok[n - 1] is not None, n
                t = g(txt)
                if j == 3: btok[n] = t
            fl.append(F(fn, 1))
        if ty == "wq":
            if with_x:
                for it in xs.get(i, []): fl += x_fillers(it)
            vo, srd_, so, flag, off = V_DWQ, SRD_WQ, s(S_WQO + i), o.wqflag, None
        elif ty == "k":
            off = (i >> 1) * 8192 + (i & 1) * 256
            vo, srd_, flag = V_DK, SRD_K, ("nt" if i >= o.knt else o.kflag)
        elif ty == "v":
            off = pv[i][2] * 512
            vo, srd_, flag = V_DV, SRD_V, o.vflag
        else:
            off = (i & 1) * 128 * 896 + (i >> 1) * 128
            vo, srd_, flag = V_DWO, SRD_WO, o.woflag
        if off is not None:
            S(f"s_mov_b32 {s(S_SO)}, {off}" if ty == "wo" else f"s_xor_b32 {s(S_SO)}, {s(S_KX if ty == 'k' else S_VX)}, {off}")
            so = s(S_SO)
        kind, k = b["slot"]
        S(f"s_mov_b32 m0, {s(S_RING + k)}" if kind == "r" else f"s_add_u32 m0, {s(S_XM)}, {LDS_X + 16384 * k}")
        for j in range(4):
            D(f"buffer_load_dwordx4 {v(vo + j)}, {s(srd_, 4)}, {so} offen offset:{1024 * j} {flag} lds", j)
        return fl

    def issue_upto(n):
        fl = []
        while Z["dma"] <= min(n, NB - 1):
            fl += dma_fillers(Z["dma"])
            Z["dma"] += 1
        return fl

    def areg(n, t, k=4, o2=0):
        b = blocks[n]
        if b["hold"] is None: return v(V_A + 16 * b["par"] + 4 * t + o2, k)
        if b["hold"] < 6: return a(A_HOLD + 16 * b["hold"] + 4 * t + o2, k)
        return v(V_H6 + 4 * t + o2, k)

    def a_reads(n, at=0):
        b = blocks[n]; ty = b["ty"]
        kind, k = b["slot"]
        fl = []
        def chk(): assert not b["coop"] or n in seen, n
        fl.append(F(chk, -1, at))
        def R(txt): fl.append(F(lambda: g(txt), 1, at))
        for t in range(4):
            if ty == "k":
                R(f"ds_read_b128 {areg(n, t)}, {v(V_NR + (t & 1))} offset:{k * 4096 + (t >> 1) * 2048}")
            else:
                if ty != "wo": ad, of = v(V_T + t), k * 4096
                elif kind == "r": ad, of = v(V_WO), k * 4096 + t * 16384
                else: ad, of = v(V_WO2), k * 16384 + t * 4096
                R(f"ds_read_b64_tr_b16 {areg(n, t, 2)}, {ad} offset:{of}")
                R(f"ds_read_b64_tr_b16 {areg(n, t, 2, 2)}, {ad} offset:{of + 2048}")
        def mark(): rtok[n] = g.last("lg")
        fl.append(F(mark, -1, at))
        return fl

    def wait_block(n, bar, at, also=None):
        def w(): g.wait(btok[n], rtok[also] if also is not None else None)
        fl = [F(w, 0, at, lambda: btok[n] is not None)]
        if bar: fl.append(F(barrier, 0, at))
        return fl

    def fetch(upto, at, qm, bar=False, mid=None, lim=999):
        fl = []
        n0 = Z["rd"]
        for n in range(n0, upto + 1):
            b = blocks[n]
            pc = n > n0 and blocks[n - 1]["coop"]
            need = (b["coop"] and n not in seen) or pc or (bar and n == upto)
            fl += wait_block(n, need, at, n - 1 if pc else None)
            if n == upto and mid: fl += mid
            fl += a_reads(n, at)
            if n > n0:
                d = issue_upto(min(n + 3, lim))
                for f in d: f.at = at; f.ok = (lambda qm=qm: not qm)
                fl += d
        Z["rd"] = max(n0, upto + 1)
        return fl

    xbump = [0]
    def b_reads(ty, i, at=0):
        B = V_B + 20 * (i & 1)
        fl = []
        def R(txt): fl.append(F(lambda: g(txt), 1, at))
        if ty == "wq":
            it, e = i >> 1, i & 1
            if it == 4 and e == 0:
                xbump[0] = 32768
                R(f"v_add_u32 {v(V_NX)}, 32768, {v(V_NX)}")
                R(f"v_add_u32 {v(V_NX + 1)}, 32768, {v(V_NX + 1)}")
            def chk(): assert xat[it] in seen, it
            fl.append(F(chk, -1, at))
            for rt in range(NT):
                R(f"ds_read_b128 {v(B + 4 * rt, 4)}, {v(V_NX + (e ^ r))} offset:{(it * NT + rt) * 2048 - xbump[0]}")
        else:
            half, idx, _ = pv[i]
            for rt in range(NT):
                R(f"ds_read_b128 {v(B + 4 * rt, 4)}, {v(V_F + half)} offset:{(idx * NT + rt) * 1024}")
        return fl

    def run(fl):
        for f in fl: f.fn()

    def sp(fl, lo=1, hi=None, ok=None):
        return spread(fl, lo, NM - 1 if hi is None else hi, ok)

    acc = lambda t, rt: V_ACC + 4 * (t * NT + rt)

    if NT == 5:
        g(f"s_lshl_b32 {s(S_T)}, {s(S_W)}, 9")
        g(f"s_add_u32 m0, {s(S_T)}, 8192")
        run(x_fillers(0))
    btok[0] = g.last("vm")
    setup2(g, o)
    g.pending.clear()
    if NT == 4:
        g(f"s_lshl2_add_u32 {s(S_T)}, s2, {s(S_W)}")
        g(f"s_cmp_lg_u32 {s(S_T)}, 32")
        g("s_cbranch_scc1 L_noepoch")
        g(f"s_add_u32 {s(S_PF)}, {s(S_PTR + 14)}, {EP_OFF}")
        g(f"s_addc_u32 {s(S_PF + 1)}, {s(S_PTR + 15)}, 0")
        g(f"s_load_dword {s(S_T)}, {s(S_PF, 2)}, 0")
        g.raw("    s_waitcnt lgkmcnt(0)")
        g(f"s_add_u32 {s(S_T)}, {s(S_T)}, 2")
        g(f"s_or_b32 {s(S_T)}, {s(S_T)}, 1")
        g(f"v_mov_b32 {v(V_EP)}, {s(S_T)}")
        g(f"v_mov_b32 {v(V_PO)}, 0")
        g("s_mov_b64 exec, 1")
        g.raw(f"    global_store_dword {v(V_PO)}, {v(V_EP)}, {s(S_PTR + 12, 2)} sc1")
        g.raw(f"    global_store_dword {v(V_PO)}, {v(V_EP)}, {s(S_PF, 2)} sc1")
        g("s_mov_b64 exec, -1")
        g.label("L_noepoch")
    late_setup(g, NT, obase)
    if first:
        run(issue_upto(2))
    else:
        for it in xs.get(1, []): run(x_fillers(it))
    stamp(g, o, "iss")
    run(fetch(0, 0, [], True, b_reads("wq", 0)))
    stamp(g, o, "first")
    if not first:
        run(dma_fillers(1, False)); Z["dma"] = 2
    run(issue_upto(2))

    qb = []
    nk0 = src[("wq", 13)] + 1
    nks = src[("k", min(i for i in range(16) if i not in KH))]
    lastbar = 0
    for m in range(14):
        n = src[("wq", m)]
        B = V_B + 20 * (m & 1)
        g.wait(g.last("lg"))
        stamp(g, o, f"s{m}")
        mf = [mfma(v(acc(t, rt), 4), areg(n, t), v(B + 4 * rt, 4), m == 0) for rt in range(NT) for t in range(4)]
        wat = NM - 8 - 3 - (0 if NT == 5 else 1)
        qm = sp(issue_upto(min(n + 4, nks + 1)))
        ql = []
        if m < 13:
            n1 = src[("wq", m + 1)]
            bar = (m & 1 and xat[(m + 1) >> 1] not in seen) or (m == 11 and lastbar < 7)
            if bar:
                lastbar = m
                ql = fetch(n1, 1, qm, True, b_reads("wq", m + 1, 1))
            else:
                ql = b_reads("wq", m + 1, 0) + fetch(n1, wat if n1 == n + 1 else 0, qm)
        else:
            if nks > nk0:
                sp(qm, 1, 4)
                ql = fetch(nk0 + 2, 0, qm)
            for rt in range(NT):
                for t in range(4):
                    c = acc(t, rt); pk_ = V_PK + 2 * ((rt * 4 + t) % 8)
                    at = rt * 4 + t + 4
                    for h2 in range(2):
                        qb.append(F(lambda c=c, h2=h2: g(f"v_pk_mul_f32 {v(c + 2 * h2, 2)}, {v(c + 2 * h2, 2)}, {s(S_SC, 2)}"), 1, at))
                    for h2 in range(2):
                        qb.append(F(lambda c=c, h2=h2, pk_=pk_: g(f"v_cvt_pk_bf16_f32 {v(pk_ + h2)}, {v(c + 2 * h2)}, {v(c + 2 * h2 + 1)}"), 1, at))
                    qb.append(F(lambda t=t, rt=rt, pk_=pk_: g(f"ds_write_b64 {v(V_QW)}, {v(pk_, 2)} offset:{((t >> 1) * NT + rt) * 1024 + (t & 1) * 512}"), 1, at))
        run_step(g, mf, qm, ql, qb, drain_b=(m == 13))
    if nks > nk0:
        run(issue_upto(Z["rd"] + 3))
        run(fetch(nk0 + 3, 0, []))
    else:
        run(issue_upto(nks + 2))
    g.wait(g.last("lg"))
    barrier()
    stamp(g, o, "q")

    BF = lambda ks, rt: a(4 * (ks * NT + rt), 4)
    sacc = lambda tile, rt: V_ACC + 20 * (tile & 1) + 4 * rt
    lacc = lambda rt: V_ACC + 40 + 4 * rt
    pk = lambda rt: V_ACC + 60 + 4 * rt

    def frag_reads(base):
        return [F(lambda ks=ks, rt=rt: g(f"ds_read_b128 {BF(ks, rt)}, {v(V_F + (1 if base else 0))} offset:{(ks * NT + rt) * 1024}"), 1, 0)
                for ks in range(8) for rt in range(NT)]

    def wo_warm(i0, nb):
        t0, t1 = V_TMP + 2, V_TMP + 3
        g(f"v_add_u32 {v(t0)}, {2 * i0}, v0")
        g(f"v_bfe_u32 {v(t1)}, {v(t0)}, 1, 1")
        g(f"v_lshlrev_b32 {v(t1)}, 7, {v(t1)}")
        g(f"v_and_or_b32 {v(t1)}, {v(t0)}, 1, {v(t1)}")
        g(f"v_mul_u32_u24 {v(t1)}, 896, {v(t1)}")
        g(f"v_lshrrev_b32 {v(t0)}, 2, {v(t0)}")
        g(f"v_lshl_add_u32 {v(t0)}, {v(t0)}, 7, {v(t1)}")
        g(f"s_mul_i32 {s(S_T)}, {s(S_SH)}, {2 * 896}")
        g(f"s_mov_b64 exec, {hex((1 << (2 * nb)) - 1)}")
        g(f"buffer_load_dword {v(V_TMP + 1)}, {v(t0)}, {s(SRD_WO, 4)}, {s(S_T)} offen")
        g("s_mov_b64 exec, -1")
        g.pending.pop(("v", V_TMP + 1))
    def code_warm(step):
        t0 = V_TMP + 2
        g(f"s_getpc_b64 {s(S_PF, 2)}")
        g.label(f"L_pc{step}_{tag}")
        g(f"s_lshr_b32 {s(S_T)}, s2, 4")
        g(f"s_lshl2_add_u32 {s(S_T)}, {s(S_T)}, {s(S_W)}")
        g(f"s_lshr_b32 {s(S_T)}, {s(S_T)}, 1")
        g(f"v_lshl_add_u32 {v(t0)}, v0, 5, {s(S_T)}")
        g(f"v_lshlrev_b32 {v(t0)}, 7, {v(t0)}")
        g(f"v_min_u32 {v(t0)}, L_end_{tag}-L_pc{step}_{tag}, {v(t0)}")
        g("s_mov_b64 exec, 15")
        g(f"global_load_dword {v(V_TMP + 1)}, {v(t0)}, {s(S_PF, 2)}")
        g("s_mov_b64 exec, -1")
        g.pending.pop(("v", V_TMP + 1))
    cpf_at = [int(x) for x in o.cpf.split(",")]
    def warm_f(step):
        k = warm_at.index(step)
        i0, nb = (0, 14) if len(warm_at) == 1 else ((0, WH), (WH, 14 - WH))[k]
        return F(lambda: wo_warm(i0, nb), 2)
    warm_at = [int(x) for x in o.wopf.split(",")]

    def softmax_fillers(tile, at):
        fl = []
        odd = tile & 1
        pi = tile >> 1
        half, idx = pgroup(pi)
        late = []
        for rt in range(NT):
            c = sacc(tile, rt)
            for i in range(4):
                fl.append(F(lambda c=c, i=i: g(f"v_exp_f32 {v(c + i)}, {v(c + i)}"), 2, at(rt)))
                if i == 1: fl += late; late = []
            for h2 in range(2):
                fl.append(F(lambda c=c, h2=h2, rt=rt: g(f"v_cvt_pk_bf16_f32 {v(pk(rt) + 2 * odd + h2)}, {v(c + 2 * h2)}, {v(c + 2 * h2 + 1)}"), 1, at(rt)))
            if odd:
                late.append(F(lambda rt=rt: g(mfma(v(lacc(rt), 4), v(V_ONE, 4), v(pk(rt), 4), pi == 0)), 3, 0))
                late.append(F(lambda rt=rt: g(f"ds_write_b128 {v(V_PW + half)}, {v(pk(rt), 4)} offset:{(idx * 4 * NT + rt) * 1024}"), 2, 0))
        return fl + late

    def tile_steps(ty, nsteps, sbase, fr, epi, plan):
        qb = []
        done = 0
        for m in range(nsteps):
            n = src[(ty, m)]
            tile, hb = m >> 1, m & 1
            g.wait(rtok[n])
            stamp(g, o, f"s{sbase + m}")
            rtm = o.rtm and hb == 1 and m > 1
            order = [(kk, rt) for rt in range(NT) for kk in range(4)] if rtm else [(kk, rt) for kk in range(4) for rt in range(NT)]
            mf = [mfma(v(sacc(tile, rt), 4), areg(n, kk), BF(4 * hb + kk, rt), hb == 0 and kk == 0) for kk, rt in order]
            qm, ql = plan(m, n)
            Z["ql"] = ql
            if m < 2:
                k = NM if m == 0 else len(fr)
                qb = fr[:k]; del fr[:k]
                run_step(g, mf, qm, ql, qb, drain_b=True, b_first=True)
            else:
                if hb == 0 and done < tile:
                    qb += epi(tile - 1, lambda rt: 2); done = tile
                nold = len(qb)
                if rtm:
                    qb += epi(tile, lambda rt: 4 * rt + 7); done = tile + 1
                nnew = len(qb) - nold
                run_step(g, mf, qm, ql, qb)
                while hb == 1 and len(qb) > nnew: qb.pop(0).fn()
        run(qb)
        if done < nsteps // 2: run(epi(nsteps // 2 - 1, lambda rt: 0))

    def plan_k(m, n):
        n1 = src[("k", m + 1)] if m < 15 else src[("v", 0)]
        wat = NM - (8 if m < 15 else 11)
        qm = issue_upto(Z["rd"] - 1 + (4 if KH and m <= max(KH) else o.kd))
        if 14 + m in warm_at: qm.insert(0, warm_f(14 + m))
        if 14 + m in cpf_at: qm.insert(0, F(lambda: code_warm(14 + m), 2))
        sp(qm, 1, min(o.khi, NM - 1))
        ql = [F(barrier, 0, 0)] if m == 8 else []
        if m == 0 and nks > nk0: ql += fetch(nks - 1, 2, qm)
        if n1 >= Z["rd"]: ql += fetch(n1, wat, qm)
        return qm, ql

    LOOK = 10
    fr = frag_reads(0)
    run(fr[:LOOK]); del fr[:LOOK]
    if not KH: run(fetch(nks, 0, []))
    tile_steps("k", 16, 14, fr, softmax_fillers, plan_k)

    def write_l():
        for rt in range(NT):
            g(f"ds_write_b32 {v(V_LW)}, {v(lacc(rt))} offset:{rt * 256}")
    write_l()
    run(issue_upto(src[("v", 0)] + 3))
    g.wait(g.last("lg"))
    barrier()
    stamp(g, o, "p")

    g.label(f"L_pv_{tag}")
    for rt in range(NT):
        g(f"ds_read_b128 {v(V_PK + 4 * rt, 4)}, {v(V_LR)} offset:{rt * 256}")
    run(b_reads("v", 0))
    for rt in range(NT):
        p = V_PK + 4 * rt
        g(f"v_add_f32 {v(p)}, {v(p)}, {v(p + 1)}")
        g(f"v_add_f32 {v(p + 2)}, {v(p + 2)}, {v(p + 3)}")
        g(f"v_add_f32 {v(V_LS + rt)}, {v(p)}, {v(p + 2)}")
        g(f"v_rcp_f32 {v(V_RI + rt)}, {v(V_LS + rt)}")
    g(f"v_max_f32 {v(V_TMP)}, {v(V_LS)}, {v(V_RI)}")
    for rt in range(1, NT):
        g(f"v_max3_f32 {v(V_TMP)}, {v(V_TMP)}, {v(V_LS + rt)}, {v(V_RI + rt)}")
    g(f"v_cmp_lt_f32 vcc, {f32(2.0 ** 60)}, {v(V_TMP)}")
    g.nop(2)
    g(f"s_cbranch_vccz L_pvgo_{tag}")
    g(f"s_cmp_eq_u32 {s(S_FLAG)}, 0")
    g(f"s_cbranch_scc1 L_slow_{tag}")
    g.label(f"L_pvgo_{tag}")
    qb = []
    nv = src[("v", 15)]
    assert not WH or wpos <= 11
    for m in range(16):
        n = src[("v", m)]
        B = V_B + 20 * (m & 1)
        g.wait(g.last("lg"))
        stamp(g, o, f"s{30 + m}")
        mf = [mfma(v(acc(t, rt), 4), areg(n, t), v(B + 4 * rt, 4), m == 0) for rt in range(NT) for t in range(4)]
        wat = NM - 8 - 3 - (0 if NT == 5 else 1)
        if m >= 15 - o.latew: wat = NM - 1
        ql = []
        if m == 12: ql.append(F(barrier, 0, 0))
        if m == 1:
            qb += fuse_setup(g, o, NT)
        qm = issue_upto(min(n + 4, nv) if WH and o.wlate else {12: nv, 13: nv, 14: nv + 1, 15: nv + 2}.get(m, n + 4))
        if 30 + m in warm_at: qm.insert(0, warm_f(30 + m))
        if 30 + m in cpf_at: qm.insert(0, F(lambda m=m: code_warm(30 + m), 2))
        sp(qm)
        if m < 15:
            n1 = src[("v", m + 1)]
            if n1 > n + 1: sp(qm, 1, 4); wat = 3
            ql += b_reads("v", m + 1, 0) + fetch(n1, wat, qm)
        else:
            for rt in range(NT):
                for p in range(2):
                    pkr = V_PK + 4 * ((rt * 2 + p) % 4)
                    at = rt * 4 + 2 * p + 4
                    for t in (2 * p, 2 * p + 1):
                        c = acc(t, rt)
                        for h2 in range(2):
                            qb.append(F(lambda c=c, h2=h2, t=t, pkr=pkr: g(f"v_cvt_pk_bf16_f32 {v(pkr + 2 * (t & 1) + h2)}, {v(c + 2 * h2)}, {v(c + 2 * h2 + 1)}"), 1, at))
                    qb.append(F(lambda p=p, rt=rt, pkr=pkr: g(f"ds_write_b128 {v(V_OW)}, {v(pkr, 4)} offset:{(p * NT + rt) * 1024}"), 1, at))
        run_step(g, mf, qm, ql, qb, drain_b=(m == 15))
    if not (WH and o.wlate): run(issue_upto(nv + 3))
    g(f"s_lshl_b32 {s(S_T2)}, {s(S_W)}, 10")
    g(f"s_lshl_b32 {s(S_XM)}, {s(S_W)}, 12")
    g(f"v_cmp_eq_u32 vcc, 0, {v(V_EP)}")
    g.wait(None if WH else btok[nv + 1], g.last("lg"))
    barrier()
    stamp(g, o, "o")

    ends = [int(x) for x in o.fgrp.split(",")]
    def out_fillers(st, at):
        fl = []
        base = V_B + 12 * (st % 3)
        for rt in range(NT):
            c = sacc(st, rt)
            for i in range(4):
                fl.append(F(lambda c=c, i=i, rt=rt: g(f"v_mul_f32 {v(c + i)}, {v(c + i)}, {v(V_RI + rt)}"), 1, at(rt)))
            for h2 in range(2):
                fl.append(F(lambda c=c, h2=h2, rt=rt: g(f"v_cvt_pk_bf16_f32 {v(base + 2 * rt + h2)}, {v(c + 2 * h2)}, {v(c + 2 * h2 + 1)}"), 1, at(rt)))
            if rt in (1, 3):
                pidx = 2 * r + (rt >> 1)
                def stx4(rt=rt, pidx=pidx):
                    g(f"s_add_u32 {s(S_ST)}, {s(S_T2)}, {(pidx * 28 + 4 * st) * 1024}")
                    stok[st] = g(f"buffer_store_dwordx4 {v(base + 2 * (rt - 1), 4)}, {v(V_F)}, {s(SRD_P, 4)}, {s(S_ST)} offen {o.stflag}")
                fl.append(F(stx4, 1, 0))
            if rt == 4:
                def stx2():
                    g(f"s_add_u32 {s(S_ST)}, {s(S_T2)}, {(112 + 4 * (st >> 1)) * 1024 + (st & 1) * 512}")
                    stok[st] = g(f"buffer_store_dwordx2 {v(base + 8, 2)}, {v(V_L8)}, {s(SRD_P, 4)}, {s(S_ST)} offen {o.stflag}")
                fl.append(F(stx2, 1, 0))
        for e in ends:
            if e < 6 and min(e + o.flagd, 6) == st: fl.append(F(lambda e=e: flag(e), 2, 2))
        return fl

    def flag(st):
        g.wait(stok[st])
        g("s_mov_b64 exec, 1")
        g(f"buffer_atomic_swap {v(V_EP)}, off, {s(SRD_WS, 4)}, {s(S_FW)} offset:{128 * st} sc1")
        g("s_mov_b64 exec, -1")

    def plan_o(m, n):
        if m == 13: return [], []
        n1 = src[("wo", m + 1)]
        if WH:
            qm = sp(issue_upto(nv + ((1, 3)[m] if m < 2 else m + 2) if o.wlate else nv + 4 + m))
            ql = []
            if m == WH - 1: ql = [F(lambda: g.wait(btok[nv + 3]), 0, 1)]
            if m == WH + 2: ql = [F(lambda: g.wait(btok[NB - 1]), 0, 1)]
            if m >= WH - 1: ql += fetch(n1, 1, qm)
            return qm, ql
        ql = fetch(n1, 1, [], True)
        qm = sp(issue_upto(n + 4), 2, None, lambda: n in free)
        return qm, ql

    if not WH: run(fetch(nv + 1, 0, []))
    fr = frag_reads(obase)
    run(fr[:LOOK]); del fr[:LOOK]
    if not WH: run(issue_upto(nv + 4))
    g(f"s_cbranch_vccnz L_ep_{tag}")
    g.label(f"L_epok_{tag}")
    tile_steps("wo", 14, 46, fr, out_fillers, plan_o)
    stamp(g, o, "out")
    flag(6)
    stamp(g, o, "flag")

    D = V_A
    g(f"s_mov_b32 {s(S_CNT)}, 0x100000")
    g(f"s_mov_b32 {s(S_T3)}, 0xffff")
    if r == 0:
        g(f"s_cmp_eq_u32 {s(S_H)}, 15")
        g(f"s_cselect_b32 {s(S_XH)}, 0, -1")
    if o.exp == 1: g(f"s_branch L_exp1_{tag}")
    g.label(f"L_poll_{tag}")
    g(f"s_mov_b32 exec_lo, {s(S_T3)}")
    g("s_mov_b32 exec_hi, 0")
    g(f"v_mov_b32 {v(V_TMP)}, 0")
    g(f"buffer_atomic_or {v(V_TMP)}, {v(V_L4)}, {s(SRD_WS, 4)}, {s(S_FR)} offen sc0 sc1")
    g(f"s_sub_u32 {s(S_CNT)}, {s(S_CNT)}, 1")
    g(f"s_cbranch_scc1 L_k1_end")
    g.wait_all(lg=False, force=True)
    g(f"v_cmp_eq_u32 vcc, {v(V_TMP)}, {v(V_EP)}")
    g("s_mov_b32 exec_lo, -1")
    g(f"s_mov_b32 exec_hi, {s(S_XH) if r == 0 else -1}")
    g(f"s_and_b32 {s(S_T)}, vcc_lo, {s(S_T3)}")
    g(f"s_cbranch_scc0 L_poll_{tag}")
    g(f"s_xor_b32 {s(S_T3)}, {s(S_T3)}, {s(S_T)}")
    if o.dyn:
        for h in range(16):
            g(f"s_bitcmp1_b32 {s(S_T)}, {h}")
            g(f"s_cbranch_scc0 L_skip{h}_{tag}")
            g(f"s_add_u32 {s(S_ST)}, {s(S_RD)}, {h * SLAB}")
            g(f"buffer_load_dwordx4 {v(D + 4 * h, 4)}, {v(V_F)}, {s(SRD_WS, 4)}, {s(S_ST)} offen {o.rdflag}")
            g.label(f"L_skip{h}_{tag}")
        g(f"s_cmp_lg_u32 {s(S_T3)}, 0")
        g(f"s_cbranch_scc1 L_poll_{tag}")
        stamp(g, o, "poll")
        g.wait_all(lg=False, force=True)
        g.pending.clear()
    else:
        g(f"s_cbranch_scc1 L_poll_{tag}")
        stamp(g, o, "poll")
        for h in range(16):
            g(f"buffer_load_dwordx4 {v(D + 4 * h, 4)}, {v(V_F)}, {s(SRD_WS, 4)}, {s(S_RD)} offen {o.rdflag}")
            if h < 15: g(f"s_add_u32 {s(S_RD)}, {s(S_RD)}, {SLAB}")
    g(f"s_mov_b32 {s(S_T)}, 0x00003f80")
    g(f"s_mov_b32 {s(S_T2)}, 0x3f800000")
    C = V_ACC
    for h in range(16):
        for i in range(4):
            src = D + 4 * h + i
            if h == 0:
                g(f"v_lshlrev_b32 {v(C + 2 * i)}, 16, {v(src)}")
                g(f"v_and_b32 {v(C + 1 + 2 * i)}, 0xffff0000, {v(src)}")
            else:
                g(f"v_dot2c_f32_bf16 {v(C + 2 * i)}, {s(S_T)}, {v(src)}")
                g(f"v_dot2c_f32_bf16 {v(C + 2 * i + 1)}, {s(S_T2)}, {v(src)}")
    g.nop(3)
    for i in range(4):
        g(f"v_cvt_pk_bf16_f32 {v(C + 12 + i)}, {v(C + 2 * i)}, {v(C + 1 + 2 * i)}")
    g(f"buffer_store_dwordx2 {v(C + 12, 2)}, {v(V_OA)}, {s(SRD_OUT, 4)}, 0 offen {o.outflag}")
    g(f"buffer_store_dwordx2 {v(C + 14, 2)}, {v(V_OA + 1)}, {s(SRD_OUT, 4)}, 0 offen {o.outflag}")
    g.label(f"L_exp1_{tag}")
    stamp(g, o, "sum")
    if o.stamps:
        g.wait_all(force=True)
        stamp(g, o, "drain")
        g("s_waitcnt lgkmcnt(0)")
        g(f"s_lshl2_add_u32 {s(S_T)}, s2, {s(S_W)}")
        g(f"s_lshl_b32 {s(S_T)}, {s(S_T)}, 7")
        g(f"s_add_u32 {s(S_T)}, {s(S_T)}, {STAMP_OFF}")
        g(f"v_mov_b32 v1, 0")
        for i in range(len(o.slist.split(','))):
            g(f"v_mov_b32 v2, {s(S_STAMP + 2 * i)}")
            g(f"v_mov_b32 v3, {s(S_STAMP + 2 * i + 1)}")
            g(f"buffer_store_dwordx2 v[2:3], v1, {s(SRD_WS, 4)}, {s(S_T)} offen offset:{8 * i}")
            g.nop(2)
    g.label(f"L_end_{tag}")
    g("s_endpgm")
    yield

    g.label(f"L_ep_{tag}")
    g.reset_state()
    g(f"s_mov_b32 {s(S_CNT)}, 0x100000")
    g(f"v_mov_b32 {v(V_TMP)}, 0")
    g.label(f"L_ep2_{tag}")
    g(f"global_load_dword {v(V_EP)}, {v(V_TMP)}, {s(S_PTR + 12, 2)} sc1")
    g.wait_all(lg=False, force=True)
    g(f"s_sub_u32 {s(S_CNT)}, {s(S_CNT)}, 1")
    g(f"s_cbranch_scc1 L_epok_{tag}")
    g(f"v_cmp_eq_u32 vcc, 0, {v(V_EP)}")
    g.nop(2)
    g(f"s_cbranch_vccnz L_ep2_{tag}")
    g(f"s_branch L_epok_{tag}")

    g.label(f"L_slow_{tag}")
    g.reset_state()
    KF = 208
    VK = V_TMP + 1
    VM = V_LS
    VP = V_TMP + 2
    g.wait_all(force=True)
    g.nop(8)
    g("s_barrier")
    g(f"s_mov_b32 {s(S_FLAG)}, 1")
    g(f"v_and_b32 {v(VK)}, 15, v0")
    g(f"v_lshlrev_b32 {v(VK)}, 9, {v(VK)}")
    g(f"v_lshrrev_b32 {v(V_TMP)}, 4, v0")
    g(f"v_lshl_add_u32 {v(VK)}, {v(V_TMP)}, 4, {v(VK)}")
    g(f"s_and_b32 {s(S_T)}, {s(S_H)}, {1 if o.ph == 2 else 0}")
    g(f"s_lshl_b32 {s(S_T)}, {s(S_T)}, 12")
    g(f"v_xor_b32 {v(VK)}, {s(S_T)}, {v(VK)}")
    g(f"v_add_u32 {v(VK)}, {BIAS}, {v(VK)}")
    for rt in range(NT):
        g(f"v_mov_b32 {v(VM + rt)}, 0xff800000")

    def slow_tile(par):
        for ks in range(8):
            g(f"buffer_load_dwordx4 {v(KF + 4 * ks, 4)}, {v(VK)}, {s(SRD_K, 4)}, {s(S_SO)} offen offset:{64 * ks}")
        for ks in range(8):
            for rt in range(NT):
                g(mfma(v(sacc(par, rt), 4), v(KF + 4 * ks, 4), BF(ks, rt), ks == 0))
    g(f"s_mov_b32 {s(S_SO)}, 0")
    g.label(f"L_slow1_{tag}")
    slow_tile(0)
    for rt in range(NT):
        c = sacc(0, rt)
        g(f"v_max3_f32 {v(VM + rt)}, {v(VM + rt)}, {v(c)}, {v(c + 1)}")
        g(f"v_max3_f32 {v(VM + rt)}, {v(VM + rt)}, {v(c + 2)}, {v(c + 3)}")
    g(f"s_add_u32 {s(S_SO)}, {s(S_SO)}, 8192")
    g(f"s_cmp_lt_u32 {s(S_SO)}, 65536")
    g(f"s_cbranch_scc1 L_slow1_{tag}")
    for rt in range(NT):
        m = VM + rt
        for op in ("v_permlane32_swap_b32", "v_permlane16_swap_b32"):
            g(f"v_mov_b32 {v(V_TMP)}, {v(m)}")
            g(f"{op} {v(V_TMP)}, {v(m)}")
            g.nop(2)
            g(f"v_max_f32 {v(m)}, {v(m)}, {v(V_TMP)}")
        g(f"ds_write_b32 {v(V_LW)}, {v(m)} offset:{2048 + rt * 256}")
    g.wait_all(force=True)
    g("s_barrier")
    for rt in range(NT):
        p = V_B + 4 * rt
        g(f"ds_read_b128 {v(p, 4)}, {v(V_LR)} offset:{2048 + rt * 256}")
        g(f"v_max3_f32 {v(p)}, {v(p)}, {v(p + 1)}, {v(p + 2)}")
        g(f"v_max_f32 {v(VM + rt)}, {v(p)}, {v(p + 3)}")
    for rt in range(NT):
        for i in range(4):
            g(f"v_mov_b32 {v(lacc(rt) + i)}, 0")
    g(f"s_mov_b32 {s(S_CNT)}, 0")
    g.label(f"L_slow2_{tag}")
    for pi in range(4):
        half, idx = pgroup(pi)
        g(f"s_cmp_eq_u32 {s(S_CNT)}, {pi}")
        g(f"s_cselect_b32 {s(S_SO)}, {ktiles[2 * pi] * 8192}, {s(S_SO)}")
        g(f"s_cselect_b32 {s(S_T)}, {half * HALF + idx * 4 * NT * 1024}, {s(S_T)}")
    g(f"s_xor_b32 {s(S_SO)}, {s(S_SO)}, {s(S_KX)}")
    g(f"v_add_u32 {v(VP)}, {s(S_T)}, {v(V_PW)}")
    for par in range(2):
        slow_tile(par)
        if par == 0:
            g(f"s_xor_b32 {s(S_SO)}, {s(S_SO)}, 8192")
        for rt in range(NT):
            c = sacc(par, rt)
            for i in range(4):
                g(f"v_sub_f32 {v(c + i)}, {v(c + i)}, {v(VM + rt)}")
            for i in range(4):
                g(f"v_exp_f32 {v(c + i)}, {v(c + i)}")
            for h2 in range(2):
                g(f"v_cvt_pk_bf16_f32 {v(pk(rt) + 2 * par + h2)}, {v(c + 2 * h2)}, {v(c + 2 * h2 + 1)}")
    for rt in range(NT):
        g(f"ds_write_b128 {v(VP)}, {v(pk(rt), 4)} offset:{rt * 1024}")
        g(mfma(v(lacc(rt), 4), v(V_ONE, 4), v(pk(rt), 4), False))
    g(f"s_add_u32 {s(S_CNT)}, {s(S_CNT)}, 1")
    g(f"s_cmp_lt_u32 {s(S_CNT)}, 4")
    g.nop(8)
    g(f"s_cbranch_scc1 L_slow2_{tag}")
    write_l()
    g.wait_all(force=True)
    g.nop(8)
    g("s_barrier")
    g(f"s_branch L_pv_{tag}")


HEAD = """; Fused MHA block: out = softmax((x wq) K^T / 16) V wo   (B=8, Sq=144, D=448, H=16, Sk=512, Dh=256, bf16)
; kernarg: x@0 k_cache@8 v_cache@16 wq@24 wo@32 out@40 debug@48 ws@56
; One workgroup per (batch, head, row half): q-projection, attention and that head's share of the output
; projection; the per-head partial outputs are handed over through ws and summed by the same workgroups.
"""


KN = "standalone__mha_block_cached__near_ridge_kernel"


def build(o):
    g = Gen()
    g.raw(HEAD.rstrip())
    g.raw(f"; @launch grid=(256,1,1) block=(256,1,1) lds={LDS_BYTES}")
    g.raw(f'.amdgcn_target "amdgcn-amd-amdhsa--gfx950"\n.text\n.globl {KN}\n.p2align 8\n.type {KN},@function')
    g.label(KN)
    prologue(g, o)
    g(f"s_cmp_eq_u32 {s(S_R)}, 1")
    g("s_cbranch_scc1 L_light")
    snap = g.snapshot()
    bh = body(g, o, 5, "h"); next(bh)
    g.raw(".p2align 6")
    g.label("L_light")
    g.restore(snap)
    bl = body(g, o, 4, "l"); next(bl)
    g.label("L_main_end")
    for b in (bh, bl):
        for _ in b: pass
    g.label("L_k1_end")
    g("s_endpgm")
    g.raw(kd(KN, 512, 256))
    return g


if __name__ == "__main__":
    o = Opt()
    out = sys.argv[1]
    for kv in sys.argv[2:]:
        k, _, val = kv.partition("=")
        cur = getattr(o, k)
        if isinstance(cur, bool): val = val in ("1", "true", "True")
        elif isinstance(cur, int): val = int(val)
        else: val = val.replace("+", " ")
        setattr(o, k, val)
    g = build(o)
    open(out, "w").write(g.text())
    print(out, "instrs", g.ninstr, "nops", g.nnops, file=sys.stderr)
```

```python
import sys, struct, math
from asmgen import Gen, v, a, s, kd, Tok

WS = 268435456
STAMP_OFF = WS - (4 << 20)
SLAB = 129 * 1024
FLAG_OFF = 17 << 20
EP_OFF = FLAG_OFF + (1 << 20)
HALF = 49152
BIAS = 3072
LDS_X = 40960
LDS_L = 90112
LDS_RING = 94208
LDS_BYTES = LDS_RING + 4 * 16384

def f32(x): return "0x%08x" % struct.unpack("<I", struct.pack("<f", x))[0]

S_W = 3
SRD_X, SRD_K, SRD_V, SRD_WQ, SRD_WO, SRD_P = 4, 8, 12, 16, 20, 24
S_RING = 28
S_B, S_H, S_R = 32, 33, 34
S_T = 35
S_PTR = 36
S_SO = 36
S_XM = 37
S_XM3 = 38
S_FLAG = 39
S_FW = 40
S_FR = 41
S_RD = 42
S_XH = 43
S_PF = 44
SRD_WS, SRD_OUT = SRD_X, SRD_WQ
S_XO = 52
S_WQO = 59
S_SH = 73
S_SC = 74
S_T2 = 76
S_T3 = 77
S_ST = 78
S_CNT = 79
S_KX = 1
S_VX = 0
S_STAMP = 80

V_T = 1
V_WO = 5
V_NR = 6
V_NX = 8
V_F = 10
V_QW = 12
V_LW = 13
V_LR = 14
V_PW = 15
V_OW = 17
V_DWQ = 18
V_DK = 22
V_DV = 26
V_DWO = 30
V_DX = 34
V_L8 = 37
V_TMP = 38
V_ONE = 44
V_ACC = 48
V_A = 128
V_B = 160
V_PK = 200
V_RI = 240
V_LS = 245
V_EP = 250
V_OA = 251
V_PO = 253
V_L4 = 254
V_WO2 = 255
V_H6 = 224
A_HOLD = 160


class Opt:
    stamps = False
    cyc = False
    slist = "start,first,q,p,o,out,flag,poll,sum,drain"
    kflag = ""
    knt = 99
    vflag = ""
    wqflag = ""
    woflag = ""
    xflag = ""
    stflag = "sc1"
    rdflag = "sc1"
    outflag = "sc1"
    codepf = True
    wopf = "25,35"
    flagd = 1
    xs = "0:0,1:123,5:4,6:5,7:6"
    alt = False
    fgrp = "3,6"
    dyn = 0
    swap = False
    earlyr = 3
    warmf = True
    exp = 0
    tlb = False
    khold = 3
    whold = 8
    wpos = "1,11"
    kd = 4
    sb = ""
    t2x = 2
    cfix = True
    serp = True
    rt1 = True
    npoll = 1
    pgap = 7
    wfirst = 6
    mix = False
    early = 99
    warmo = True
    pw = "b128"
    kwat = 8
    x_w = 0
    warmh = False
    cpf = "33"
    kh = "0145"
    rtm = True
    wplan = "1,2,3,4,5,6,7"
    wafter = True
    x_hit = False
    ph = 2
    latew = 2
    spread = True
    pace1 = True
    pace2 = True
    pace3 = True
    khi = 19
    x_nobar = False
    x_nodma = False
    x_nost = False
    x_noepi = False


def stamp(g, o, name):
    if o.stamps:
        names = o.slist.split(",")
        if name in names:
            i = names.index(name)
            g(f"{'s_memtime' if o.cyc else 's_memrealtime'} {s(S_STAMP + 2 * i, 2)}")


def srd(g, dst, ptr, off, total, bias=0):
    if bias:
        g(f"s_sub_u32 {s(ptr)}, {s(ptr)}, {bias}")
        g(f"s_subb_u32 {s(ptr + 1)}, {s(ptr + 1)}, 0")
    g(f"s_add_u32 {s(dst)}, {s(ptr)}, {s(off)}")
    g(f"s_addc_u32 {s(dst + 1)}, {s(ptr + 1)}, 0")
    g(f"s_sub_u32 {s(dst + 2)}, {total + bias}, {s(off)}")
    g(f"s_mov_b32 {s(dst + 3)}, 0x20000")


def prologue(g, o):
    stamp(g, o, "start")
    g("s_cmp_ge_u32 s2, 256")
    g("s_cbranch_scc1 L_k1_end")
    g(f"s_load_dwordx16 {s(S_PTR, 16)}, s[0:1], 0")
    g("v_lshrrev_b32 v1, 6, v0")
    g("v_and_b32 v0, 63, v0")
    g(f"v_readfirstlane_b32 {s(S_W)}, v1")
    q, pos, t0, t1, t2, t3 = range(V_TMP, V_TMP + 6)
    g(f"v_lshrrev_b32 {v(q)}, 3, v0")
    g(f"v_and_b32 {v(pos)}, 7, v0")
    g(f"s_bfe_u32 {s(S_R)}, s2, 0x10003")
    g(f"s_bfe_u32 {s(S_B)}, s2, 0x30004")
    g(f"s_lshr_b32 {s(S_T2)}, s2, 7")
    g(f"s_and_b32 {s(S_H)}, s2, 7")
    g(f"s_lshl1_add_u32 {s(S_H)}, {s(S_H)}, {s(S_T2)}")
    g(f"s_bfe_u32 {s(S_SH)}, s2, 0x40003")
    g(f"s_mul_i32 {s(S_T2)}, {s(S_T2)}, 3")
    g(f"s_add_u32 {s(S_T)}, {s(S_B)}, {s(S_T2)}")
    g(f"s_cmp_ge_u32 {s(S_T)}, 7")
    g(f"s_cselect_b32 {s(S_T2)}, 7, 0")
    g(f"s_sub_u32 {s(S_CNT)}, {s(S_T)}, {s(S_T2)}")
    g(f"s_lshl_b32 {s(S_XO)}, {s(S_CNT)}, 7")
    g(f"s_lshl1_add_u32 {s(S_T)}, {s(S_CNT)}, {s(S_R)}")
    g(f"s_lshl_b32 {s(S_WQO)}, {s(S_T)}, 18")
    g(f"s_lshl_b32 {s(S_T)}, {s(S_W)}, 14")
    g(f"s_add_u32 {s(S_RING)}, {s(S_T)}, {LDS_RING}")
    g(f"v_and_b32 {v(t3)}, 6, {v(q)}")
    g(f"v_xor_b32 {v(t3)}, {v(t3)}, {v(pos)}")
    g(f"v_lshlrev_b32 {v(t3)}, 4, {v(t3)}")
    g(f"v_and_b32 {v(t1)}, 4, {v(q)}")
    g(f"v_add_u32 {v(t1)}, {v(t1)}, {v(q)}")
    g(f"v_lshl_add_u32 {v(V_DWQ)}, {v(t1)}, 13, {v(t3)}")
    for j, kb in enumerate([0, 16, 4, 20]):
        if j: g(f"v_add_u32 {v(V_DWQ + j)}, {kb * 8192 - 1024 * j}, {v(V_DWQ)}")
    g(f"v_mul_u32_u24 {v(t1)}, 896, {v(q)}")
    g(f"v_lshrrev_b32 {v(t0)}, 1, {v(q)}")
    g(f"v_xor_b32 {v(t0)}, {v(t0)}, {v(pos)}")
    g(f"v_lshlrev_b32 {v(t0)}, 4, {v(t0)}")
    g(f"v_xor_b32 {v(t2)}, 64, {v(t0)}")
    g(f"s_mul_i32 {s(S_T)}, {s(S_W)}, {16 * 896}")
    g(f"v_add3_u32 {v(V_DX)}, {v(t1)}, {v(t0)}, {s(S_T)}")
    g(f"s_add_u32 {s(S_T)}, {s(S_T)}, {8 * 896 - 1024}")
    g(f"v_add3_u32 {v(V_DX + 1)}, {v(t1)}, {v(t2)}, {s(S_T)}")
    g(f"s_mul_i32 {s(S_T)}, {s(S_B)}, {144 * 896}")
    g(f"s_mul_i32 {s(S_T2)}, {s(S_R)}, {80 * 896}")
    g(f"s_add_u32 {s(S_T)}, {s(S_T)}, {s(S_T2)}")
    g(f"s_lshl2_add_u32 {s(S_T2)}, {s(S_H)}, {s(S_W)}")
    g(f"s_lshl_b32 {s(S_T2)}, {s(S_T2)}, 7")
    g(f"s_lshl_b32 m0, {s(S_W)}, 11")
    g("s_waitcnt lgkmcnt(0)")
    srd(g, SRD_X, S_PTR, S_T, 8 * 144 * 896)
    stamp(g, o, "pro")
    g(f"buffer_load_dwordx4 {v(V_DX)}, {s(SRD_X, 4)}, {s(S_XO)} offen {o.xflag} lds")
    g(f"buffer_load_dwordx4 {v(V_DX + 1)}, {s(SRD_X, 4)}, {s(S_XO)} offen offset:1024 {o.xflag} lds")
    g(f"s_mov_b32 m0, {s(S_RING)}")
    srd(g, SRD_WQ, S_PTR + 6, S_T2, 448 * 8192)
    for j in range(4):
        g(f"buffer_load_dwordx4 {v(V_DWQ + j)}, {s(SRD_WQ, 4)}, {s(S_WQO)} offen offset:{1024 * j} {o.wqflag} lds")
    if o.codepf:
        g(f"s_getpc_b64 {s(S_SC, 2)}")
        g(f"s_lshl2_add_u32 {s(S_T)}, {s(S_SH)}, {s(S_W)}")
        g(f"v_lshl_add_u32 v2, v0, 6, {s(S_T)}")
        g(f"v_lshlrev_b32 v2, 7, v2")
        g(f"v_min_u32 v2, L_main_end-{KN}-512, v2")
        g("s_mov_b64 exec, 0x1ff")
        g(f"global_load_dword {v(V_RI)}, v2, {s(S_SC, 2)}")
        g("s_mov_b64 exec, -1")
    g(f"s_lshl_b32 {s(S_T)}, {s(S_W)}, 5")
    g(f"v_xor_b32 {v(V_DX + 2)}, {s(S_T)}, {v(t0)}")
    g(f"s_mul_i32 {s(S_T)}, {s(S_W)}, {4 * 896}")
    g(f"s_add_u32 {s(S_T)}, {s(S_T)}, {64 * 896}")
    g(f"v_add3_u32 {v(V_DX + 2)}, {v(t1)}, {v(V_DX + 2)}, {s(S_T)}")
    g(f"s_lshl_b32 {s(S_XM)}, {s(S_W)}, 11")


def setup2(g, o):
    q, pos, t0, t1, t2, t3 = range(V_TMP, V_TMP + 6)
    g(f"s_xor_b32 {s(S_WQO + 1)}, {s(S_WQO)}, 0x40000")
    for it in range(1, 7):
        g(f"s_add_u32 {s(S_CNT)}, {s(S_CNT)}, 1")
        g(f"s_cmp_eq_u32 {s(S_CNT)}, 7")
        g(f"s_cselect_b32 {s(S_CNT)}, 0, {s(S_CNT)}")
        g(f"s_lshl_b32 {s(S_XO + it)}, {s(S_CNT)}, 7")
        g(f"s_lshl1_add_u32 {s(S_T)}, {s(S_CNT)}, {s(S_R)}")
        g(f"s_lshl_b32 {s(S_WQO + 2 * it)}, {s(S_T)}, 18")
        g(f"s_xor_b32 {s(S_WQO + 2 * it + 1)}, {s(S_WQO + 2 * it)}, 0x40000")
    for i in range(1, 4):
        g(f"s_add_u32 {s(S_RING + i)}, {s(S_RING)}, {4096 * i}")
    g(f"s_lshl_b32 {s(S_KX)}, {s(S_B)}, 13" if o.ph else f"s_mov_b32 {s(S_KX)}, 0")
    g(f"s_and_b32 {s(S_VX)}, {s(S_KX)}, 0xc000")
    g(f"s_and_b32 {s(S_T2)}, {s(S_H)}, {1 if o.ph == 2 else 0}")
    g(f"s_lshl_b32 {s(S_T2)}, {s(S_T2)}, 12")
    g(f"s_and_b32 {s(S_T3)}, {s(S_KX)}, 0x2000")
    g(f"s_or_b32 {s(S_T3)}, {s(S_T3)}, {s(S_T2)}")
    g(f"v_add_u32 {v(V_DWO)}, {v(t1)}, {v(t3)}")
    g(f"v_lshl_add_u32 {v(t3)}, {v(q)}, 9, {v(t3)}")
    for j in range(4):
        g(f"s_xor_b32 {s(S_T)}, {s(S_T3)}, {4096 * j}")
        g(f"s_add_u32 {s(S_T)}, {s(S_T)}, {BIAS - 1024 * j}")
        g(f"v_add_u32 {v(V_DV + j)}, {s(S_T)}, {v(t3)}")
    g(f"v_lshl_add_u32 {v(t0)}, {v(q)}, 9, {v(t0)}")
    g(f"v_lshl_add_u32 {v(t2)}, {v(q)}, 9, {v(t2)}")
    for j in range(4):
        g(f"s_xor_b32 {s(S_T)}, {s(S_T2)}, {4096 * (j & 1)}")
        g(f"s_add_u32 {s(S_T)}, {s(S_T)}, {BIAS + 128 * (j >> 1) - 1024 * j}")
        g(f"v_add_u32 {v(V_DK + j)}, {s(S_T)}, {v(t2 if j & 1 else t0)}")
    g(f"s_lshl4_add_u32 {s(S_T3)}, {s(S_B)}, {s(S_H)}")
    g(f"s_lshl_b32 {s(S_T)}, {s(S_T3)}, 18" if not o.x_hit else f"s_mov_b32 {s(S_T)}, 0")
    g(f"s_lshl_b32 {s(S_T2)}, {s(S_W)}, 7")
    g(f"s_add_u32 {s(S_T2)}, {s(S_T)}, {s(S_T2)}")
    srd(g, SRD_V, S_PTR + 4, S_T2, 1 << 25, BIAS)
    g(f"s_lshl_b32 {s(S_T2)}, {s(S_W)}, 16")
    g(f"s_add_u32 {s(S_T)}, {s(S_T)}, {s(S_T2)}")
    srd(g, SRD_K, S_PTR + 2, S_T, 1 << 25, BIAS)
    g(f"s_lshl3_add_u32 {s(S_T)}, {s(S_H)}, {s(S_W)}")
    g(f"s_mul_i32 {s(S_T)}, {s(S_T)}, {32 * 896}")
    srd(g, SRD_WO, S_PTR + 8, S_T, 4096 * 896)
    g(f"s_mul_i32 {s(S_T)}, {s(S_T3)}, {SLAB}")
    srd(g, SRD_P, S_PTR + 14, S_T, WS)
    g(f"s_lshl_b32 {s(S_XM3)}, {s(S_W)}, 9")
    g(f"s_add_u32 {s(S_XM3)}, {s(S_XM3)}, 8192")


def late_setup(g, NT, obase):
    t0, t1, t2, gg, row = V_TMP, V_TMP + 1, V_TMP + 2, V_TMP + 3, V_TMP + 4
    for j in range(1, 4):
        g(f"v_add_u32 {v(V_DWO + j)}, {(8 * 896 - 1024) * j}, {v(V_DWO)}")
    g(f"v_lshrrev_b32 {v(gg)}, 4, v0")
    g(f"v_and_b32 {v(row)}, 15, v0")
    g(f"v_lshrrev_b32 {v(t0)}, 2, v0")
    g(f"v_and_b32 {v(t1)}, 6, {v(t0)}")
    g(f"v_bfe_u32 {v(t2)}, v0, 1, 1")
    g(f"v_or_b32 {v(t1)}, {v(t1)}, {v(t2)}")
    g(f"v_lshlrev_b32 {v(t1)}, 4, {v(t1)}")
    g(f"v_lshl_add_u32 {v(t1)}, {v(t0)}, 7, {v(t1)}")
    g(f"v_and_b32 {v(t2)}, 1, v0")
    g(f"v_lshl_add_u32 {v(t1)}, {v(t2)}, 3, {v(t1)}")
    for t in range(4):
        g(f"v_xor_b32 {v(t2)}, {32 * t}, {v(t1)}")
        g(f"v_add_u32 {v(V_T + t)}, {s(S_RING)}, {v(t2)}")
    g(f"s_lshl_b32 {s(S_T)}, {s(S_W)}, 5")
    g(f"v_xor_b32 {v(t2)}, {s(S_T)}, {v(t1)}")
    g(f"v_add_u32 {v(V_WO)}, {LDS_RING}, {v(t2)}")
    g(f"v_add_u32 {v(V_WO2)}, {LDS_X}, {v(t2)}")
    g(f"v_lshrrev_b32 {v(t0)}, 1, {v(row)}")
    g(f"v_xor_b32 {v(t0)}, {v(t0)}, {v(gg)}")
    g(f"v_lshlrev_b32 {v(t0)}, 4, {v(t0)}")
    g(f"v_lshl_add_u32 {v(V_NX)}, {v(row)}, 7, {v(t0)}")
    g(f"v_xor_b32 {v(V_NX + 1)}, 64, {v(V_NX)}")
    g(f"v_add_u32 {v(V_NR)}, {s(S_RING)}, {v(V_NX)}")
    g(f"v_add_u32 {v(V_NR + 1)}, {s(S_RING)}, {v(V_NX + 1)}")
    g(f"v_lshlrev_b32 {v(V_F)}, 4, v0")
    g(f"v_add_u32 {v(V_F + 1)}, {HALF}, {v(V_F)}")
    g(f"v_lshlrev_b32 {v(V_L8)}, 3, v0")
    g(f"v_lshrrev_b32 {v(t0)}, 1, {v(gg)}")
    g(f"v_lshl_add_u32 {v(t0)}, {v(t0)}, 4, {v(row)}")
    g(f"v_lshlrev_b32 {v(t0)}, 4, {v(t0)}")
    g(f"v_and_b32 {v(t1)}, 1, {v(gg)}")
    g(f"v_lshl_add_u32 {v(t0)}, {v(t1)}, 3, {v(t0)}")
    g(f"s_mul_i32 {s(S_T)}, {s(S_W)}, {2 * NT * 1024}")
    g(f"v_add_u32 {v(V_QW)}, {s(S_T)}, {v(t0)}")
    g(f"v_add_u32 {v(V_OW)}, {s(S_T)}, {v(V_F + (1 if obase else 0))}")
    g(f"s_mul_i32 {s(S_T)}, {s(S_W)}, {NT * 1024}")
    g(f"v_add_u32 {v(V_PW)}, {s(S_T)}, {v(V_F)}")
    g(f"v_add_u32 {v(V_PW + 1)}, {s(S_T)}, {v(V_F + 1)}")
    g(f"v_lshlrev_b32 {v(t0)}, 4, {v(row)}")
    g(f"v_add_u32 {v(V_LR)}, {LDS_L}, {v(t0)}")
    g(f"s_lshl_b32 {s(S_T)}, {s(S_W)}, 2")
    g(f"v_add_u32 {v(V_LW)}, {s(S_T)}, {v(V_LR)}")
    for i in range(4):
        g(f"v_mov_b32 {v(V_ONE + i)}, 0x3f803f80")
    sc = f32(math.log2(math.e) / 16.0)
    g(f"s_mov_b32 {s(S_SC)}, {sc}")
    g(f"s_mov_b32 {s(S_SC + 1)}, {sc}")
    g(f"s_mov_b32 {s(S_FLAG)}, 0")


TASKS = [[(2, 0), (3, 0), (0, 0), (1, 0), (2, 1), (3, 1), (0, 1), (1, 1)],
         [(4, 1), (2, 2), (3, 2), (0, 2), (1, 2), (2, 3), (3, 3), (0, 3)],
         [(1, 3), (4, 3), (2, 4), (3, 4), (0, 4), (1, 4), (2, 5), (3, 5)],
         [(2, 6), (3, 6), (0, 5), (1, 5), (4, 5), (0, 6), (1, 6), (4, 6)]]
assert len(set(sum(TASKS, []))) == 32


def fuse_setup(g, o, NT):
    r = 0 if NT == 5 else 1
    kt = [sum(k << (4 * i) for i, (k, _) in enumerate(t)) for t in TASKS]
    stt = [sum(x << (4 * i) for i, (_, x) in enumerate(t)) for t in TASKS]
    ends = [int(x) for x in o.fgrp.split(",")]
    ft = sum(min(e for e in ends if e >= x) << (4 * x) for x in range(7))
    K, ST, T, T2 = S_XO, S_XO + 1, S_XO + 2, S_XO + 3
    P = S_XO + 4
    CW = S_XO + 6
    t0, t1 = V_TMP + 4, V_TMP + 5
    q = r ^ int(o.swap)
    L = []
    L += [f"s_mov_b32 {s(SRD_WS)}, {s(S_PTR + 14)}", f"s_mov_b32 {s(SRD_WS + 1)}, {s(S_PTR + 15)}",
          f"s_mov_b32 {s(SRD_WS + 2)}, {WS}", f"s_mov_b32 {s(SRD_WS + 3)}, 0x20000",
          f"s_mov_b32 {s(SRD_OUT)}, {s(S_PTR + 10)}", f"s_mov_b32 {s(SRD_OUT + 1)}, {s(S_PTR + 11)}",
          f"s_mov_b32 {s(SRD_OUT + 2)}, {8 * 144 * 896}", f"s_mov_b32 {s(SRD_OUT + 3)}, 0x20000",
          f"v_mov_b32 {v(V_PO)}, 0",
          f"global_load_dword {v(V_EP)}, {v(V_PO)}, {s(S_PTR + 12, 2)} sc1",
          ] + ([
          f"s_mov_b32 {s(K)}, {kt[1 - r]}", f"s_mov_b32 {s(ST)}, {stt[1 - r]}",
          (f"s_cmp_eq_u32 {s(S_W)}, 2", f"s_cselect_b32 {s(K)}, {kt[2]}, {s(K)}", f"s_cselect_b32 {s(ST)}, {stt[2]}, {s(ST)}"),
          (f"s_cmp_eq_u32 {s(S_W)}, 3", f"s_cselect_b32 {s(K)}, {kt[3]}, {s(K)}", f"s_cselect_b32 {s(ST)}, {stt[3]}, {s(ST)}"),
          (f"s_cmp_lt_u32 {s(S_W)}, 2", f"s_cselect_b32 {s(CW)}, {s(S_W)}, {r}"),
          f"s_and_b32 {s(T)}, {s(S_H)}, 1", f"s_lshl1_add_u32 {s(CW)}, {s(T)}, {s(CW)}",
          f"s_lshr_b32 {s(T)}, {s(S_H)}, 1"] if o.mix else [
          f"s_mov_b32 {s(K)}, {kt[2 - 2 * q]}", f"s_mov_b32 {s(ST)}, {stt[2 - 2 * q]}",
          (f"s_cmp_ge_u32 {s(S_H)}, 8", f"s_cselect_b32 {s(K)}, {kt[3 - 2 * q]}, {s(K)}", f"s_cselect_b32 {s(ST)}, {stt[3 - 2 * q]}, {s(ST)}"),
          f"s_mov_b32 {s(CW)}, {s(S_W)}", f"s_and_b32 {s(T)}, {s(S_H)}, 7"]) + [
          f"s_lshl_b32 {s(T)}, {s(T)}, 2",
          f"s_lshr_b32 {s(K)}, {s(K)}, {s(T)}", f"s_and_b32 {s(K)}, {s(K)}, 15",
          f"s_lshr_b32 {s(ST)}, {s(ST)}, {s(T)}", f"s_and_b32 {s(ST)}, {s(ST)}, 15",
          f"s_lshl3_add_u32 {s(T)}, {s(K)}, {s(ST)}",
          (f"s_cmp_eq_u32 {s(T)}, {4 * 8 + 6}", f"s_cselect_b32 {s(S_XH)}, 0, -1"),
          f"s_lshl3_add_u32 {s(T2)}, {s(S_B)}, {s(S_W)}", f"s_mul_i32 {s(T2)}, {s(T2)}, 896",
          f"s_lshl2_add_u32 {s(T2)}, {s(S_H)}, {s(T2)}", f"s_add_u32 {s(S_FW)}, {s(T2)}, {FLAG_OFF + r * 4 * 896}",
          f"s_lshl3_add_u32 {s(T2)}, {s(S_B)}, {s(CW)}", f"s_mul_i32 {s(T2)}, {s(T2)}, 896",
          f"s_lshl_b32 {s(T)}, {s(ST)}, 2", f"s_lshr_b32 {s(P)}, {ft}, {s(T)}", f"s_and_b32 {s(P)}, {s(P)}, 15",
          f"s_bfe_u32 {s(T)}, {s(K)}, 0x10001", f"s_mul_i32 {s(T)}, {s(T)}, {4 * 7}", f"s_add_u32 {s(T)}, {s(T)}, {s(P)}",
          f"s_lshl_b32 {s(T)}, {s(T)}, 7", f"s_add_u32 {s(T)}, {s(T)}, {s(T2)}", f"s_add_u32 {s(S_FR)}, {s(T)}, {FLAG_OFF}",
          f"s_lshr_b32 {s(T)}, {s(K)}, 2", f"s_lshr_b32 {s(T)}, {s(ST)}, {s(T)}", f"s_lshl_b32 {s(T)}, {s(T)}, 2",
          f"s_mul_i32 {s(T2)}, {s(K)}, 28", f"s_add_u32 {s(T)}, {s(T)}, {s(T2)}", f"s_add_u32 {s(T)}, {s(T)}, {s(CW)}",
          f"s_lshl_b32 {s(T)}, {s(T)}, 10", f"s_mul_i32 {s(T2)}, {s(S_B)}, {16 * SLAB}", f"s_add_u32 {s(S_RD)}, {s(T)}, {s(T2)}",
          f"s_lshl_b32 {s(T)}, {s(K)}, 3", f"s_mov_b32 {s(P)}, {0 | 32 << 8 | 80 << 16 | 112 << 24}", f"s_mov_b32 {s(P + 1)}, 64",
          f"s_lshr_b64 {s(P, 2)}, {s(P, 2)}, {s(T)}", f"s_and_b32 {s(T)}, {s(P)}, 255",
          f"s_mul_i32 {s(T2)}, {s(S_B)}, 144", f"s_add_u32 {s(T)}, {s(T)}, {s(T2)}", f"s_mul_i32 {s(T)}, {s(T)}, 896",
          f"s_lshr_b32 {s(T2)}, {s(K)}, 2", f"s_andn2_b32 {s(T2)}, {s(ST)}, {s(T2)}", f"s_lshl_b32 {s(T2)}, {s(T2)}, 2",
          f"s_add_u32 {s(T2)}, {s(T2)}, {s(CW)}", f"s_lshl_b32 {s(T2)}, {s(T2)}, 5", f"s_add_u32 {s(T)}, {s(T)}, {s(T2)}",
          f"v_and_b32 {v(t0)}, 15, v0", f"v_mul_u32_u24 {v(t0)}, 896, {v(t0)}", f"v_lshrrev_b32 {v(t1)}, 4, v0",
          f"v_lshl_add_u32 {v(V_OA)}, {v(t1)}, 3, {v(t0)}",
          f"v_and_b32 {v(t0)}, 7, v0", f"v_mul_u32_u24 {v(t0)}, {2 * 896}, {v(t0)}", f"v_bfe_u32 {v(t1)}, v0, 3, 2",
          f"v_lshl_add_u32 {v(t0)}, {v(t1)}, 3, {v(t0)}", f"v_lshrrev_b32 {v(t1)}, 5, v0",
          f"v_lshl_add_u32 {v(t0)}, {v(t1)}, 7, {v(t0)}"]
    def emit(t):
        for x in ((t,) if isinstance(t, str) else t): g(x)
    fl = [F(lambda t=t: emit(t), 1 if isinstance(t, str) else 2, 0) for t in L]
    def sel():
        g(f"s_cmp_eq_u32 {s(K)}, 4")
        g(f"s_cselect_b64 vcc, -1, 0")
        g(f"s_cselect_b32 {s(T2)}, 896, {16 * 896}".replace(f", {16 * 896}", f", {s(P)}"))
    fl.append(F(lambda: g(f"s_mov_b32 {s(P)}, {16 * 896}"), 1, 0))
    fl.append(F(sel, 2, 0))
    L2 = [f"v_cndmask_b32 {v(V_OA)}, {v(V_OA)}, {v(t0)}, vcc",
          f"v_add_u32 {v(V_OA)}, {s(T)}, {v(V_OA)}", f"v_add_u32 {v(V_OA + 1)}, {s(T2)}, {v(V_OA)}",

          f"v_lshlrev_b32 {v(V_L4)}, 2, v0"]
    fl += [F(lambda t=t: g(t), 1, 0) for t in L2]
    if o.warmo:
        def warm_out():
            g(f"s_mov_b32 exec_hi, {s(S_XH)}")
            for k in range(2):
                g(f"buffer_load_dword {v(V_TMP + 1)}, {v(V_OA + k)}, {s(SRD_OUT, 4)}, 0 offen")
                g.pending.pop(("v", V_TMP + 1))
            g("s_mov_b32 exec_hi, -1")
        fl.append(F(warm_out, 2, 0))
    if o.warmf:
        def warm():
            lab = f"L_nowarm_{NT}"
            g(f"s_cmp_lg_u32 {s(S_H)}, 0")
            g(f"s_cbranch_scc1 {lab}")
            g("s_mov_b64 exec, 1")
            for e in ends:
                g.raw(f"    buffer_atomic_or {v(V_PO)}, off, {s(SRD_WS, 4)}, {s(S_FW)} offset:{128 * e} sc1")
            g("s_mov_b64 exec, -1")
            g.label(lab)
        fl.append(F(warm, 2, 0))
    return fl


class F:
    def __init__(self, fn, cost=1, at=0, ok=None):
        self.fn, self.cost, self.at, self.ok = fn, cost, at, ok

    def ready(self, i):
        return self.at <= i and (self.ok is None or self.ok())


def mfma(d, A, B, first):
    return f"v_mfma_f32_16x16x32_bf16 {d}, {A}, {B}, {'0' if first else d}"


def run_step(g, mf, qm, ql, qb, drain_b=False, b_first=False):
    for i, m in enumerate(mf):
        g(m)
        budget, sal, took = 2, 1, 0
        pend_b = b_first
        while True:
            hit = False
            for q in (ql, qm, qb):
                if q and q[0].ready(i) and q[0].cost <= 0 and (q[0].cost < 0 or sal > 0 or budget > 0):
                    f = q.pop(0)
                    if f.cost == 0:
                        if sal > 0: sal -= 1
                        else: budget -= 1
                    f.fn(); hit = True
                    break
            if hit: continue
            sal = 0
            b_ready = bool(qb) and qb[0].ready(i)
            if pend_b and b_ready and qb[0].cost == 1:
                f = qb.pop(0); budget -= f.cost; f.fn(); pend_b = False
                continue
            if qm and qm[0].ready(i) and 0 < qm[0].cost <= budget:
                f = qm.pop(0); budget -= f.cost; f.fn()
                continue
            if ql and ql[0].ready(i) and 0 < ql[0].cost <= budget and (took == 0 or not b_ready or qb[0].cost > budget):
                f = ql.pop(0); budget -= f.cost; took += 1; f.fn()
                continue
            if b_ready and qb[0].cost > 0 and (budget >= qb[0].cost or (qb[0].cost > 2 and budget == 2)):
                f = qb.pop(0); budget -= f.cost; f.fn()
                if f.cost > 2: budget = 2
                continue
            break
    while ql or qm:
        if qm and (qm[0].ok is None or qm[0].ok()): qm.pop(0).fn()
        else:
            assert ql[0].ok is None or ql[0].ok()
            ql.pop(0).fn()
    for f in qb:
        f.at = 0
    if drain_b:
        while qb:
            qb.pop(0).fn()


def spread(fl, lo, hi, ok=None):
    nv = sum(1 for f in fl if f.cost > 0)
    k = 0
    for f in fl:
        p = lo + (k * (hi - lo + 1)) // max(nv, 1)
        if f.cost > 0:
            f.at = p; f.ok = ok; k += 1
        else:
            f.at = max(p - 1, 0)
    return fl


def body(g, o, NT, tag):
    r = 0 if NT == 5 else 1
    NM = 4 * NT
    def pgroup(pi):
        return (1 - (pi >> 1), pi & 1)
    pv = []
    for p in (2, 3, 0, 1):
        half, idx = pgroup(p)
        for w2 in range(4):
            pv.append((half, idx * 4 + w2, 128 * w2 + 32 * p))
    obase = 0
    ktiles = list(range(8))

    KH = [int(c, 16) for c in o.kh] if o.khold else []
    first = o.khold in (1, 2) and (o.khold == 1) == (NT == 4)
    WH = o.whold
    wpos = int(o.wpos.split(",")[r])
    seq = [("wq", 0)] + ([("k", i) for i in KH] if first else []) + [("wq", n) for n in range(1, 14)]
    seq += ([] if first else [("k", i) for i in KH]) + [("k", i) for i in range(16) if i not in KH]
    for i in range(16):
        seq.append(("v", i))
        if i == wpos: seq += [("wo", j) for j in range(WH)]
    seq += [("wo", j) for j in range(WH, 14)]
    blocks = []
    nring = npar = 0
    for ty, i in seq:
        b = dict(ty=ty, i=i, hold=None, coop=(ty == "wo"), prev=None)
        if ty == "k" and i in KH: b["hold"] = KH.index(i)
        if ty == "wo" and i < WH: b["hold"] = i
        if ty == "wo" and WH and i >= WH + 4:
            b["slot"] = ("x", i - WH - 4)
            assert i - WH - 4 < 3
        else:
            b["slot"] = ("r", nring & 3)
            if nring >= 4: b["prev"] = len(blocks) - 4
            nring += 1
        if b["hold"] is None:
            b["par"] = npar & 1; npar += 1
        blocks.append(b)
    NB = len(blocks)
    src = {(b["ty"], b["i"]): n for n, b in enumerate(blocks)}
    xs = {int(e.split(":")[0]): [int(c) for c in e.split(":")[1]] for e in o.xs.split(",")}
    xat = {it: src[("wq", n)] for n, its in xs.items() for it in its}
    btok, rtok = [None] * NB, [None] * NB
    seen, free = set(), set()
    Z = {"dma": 1, "rd": 0}
    stok = [None] * 7

    def barrier():
        g("s_barrier")
        for n in range(NB):
            if btok[n] is not None and g.done["vm"] >= btok[n].n: seen.add(n)
            if rtok[n] is not None and g.done["lg"] >= rtok[n].n: free.add(n)

    def x_fillers(it):
        fl = []
        if it:
            fl.append(F(lambda: g(f"s_add_u32 m0, {s(S_XM)}, {it * NT * 2048}"), 0))
            fl.append(F(lambda: g(f"buffer_load_dwordx4 {v(V_DX)}, {s(SRD_X, 4)}, {s(S_XO + it)} offen {o.xflag} lds")))
            fl.append(F(lambda: g(f"buffer_load_dwordx4 {v(V_DX + 1)}, {s(SRD_X, 4)}, {s(S_XO + it)} offen offset:1024 {o.xflag} lds")))
        if NT == 5:
            if it: fl.append(F(lambda: g(f"s_add_u32 m0, {s(S_XM3)}, {it * NT * 2048}"), 0))
            def third():
                g("s_mov_b32 exec_hi, 0")
                g(f"buffer_load_dwordx4 {v(V_DX + 2)}, {s(SRD_X, 4)}, {s(S_XO + it)} offen {o.xflag} lds")
                g("s_mov_b32 exec_hi, -1")
            fl.append(F(third, 2))
        return fl

    def dma_fillers(n, with_x=True):
        b = blocks[n]; ty, i = b["ty"], b["i"]
        fl = []
        def S(txt): fl.append(F(lambda: g(txt), 0))
        def D(txt, j):
            def fn():
                if j == 0 and b["prev"] is not None:
                    p = b["prev"]
                    assert rtok[p] is not None, (n, p)
                    g.wait(rtok[p])
                    assert not blocks[p]["coop"] or p in free, (n, p)
                if j == 0: assert n == 0 or btok[n - 1] is not None, n
                t = g(txt)
                if j == 3: btok[n] = t
            fl.append(F(fn, 1))
        if ty == "wq":
            if with_x:
                for it in xs.get(i, []): fl += x_fillers(it)
            vo, srd_, so, flag, off = V_DWQ, SRD_WQ, s(S_WQO + i), o.wqflag, None
        elif ty == "k":
            off = (i >> 1) * 8192 + (i & 1) * 256
            vo, srd_, flag = V_DK, SRD_K, ("nt" if i >= o.knt else o.kflag)
        elif ty == "v":
            off = pv[i][2] * 512
            vo, srd_, flag = V_DV, SRD_V, o.vflag
        else:
            off = (i & 1) * 128 * 896 + (i >> 1) * 128
            vo, srd_, flag = V_DWO, SRD_WO, o.woflag
        if off is not None:
            S(f"s_mov_b32 {s(S_SO)}, {off}" if ty == "wo" else f"s_xor_b32 {s(S_SO)}, {s(S_KX if ty == 'k' else S_VX)}, {off}")
            so = s(S_SO)
        kind, k = b["slot"]
        S(f"s_mov_b32 m0, {s(S_RING + k)}" if kind == "r" else f"s_add_u32 m0, {s(S_XM)}, {LDS_X + 16384 * k}")
        for j in range(4):
            D(f"buffer_load_dwordx4 {v(vo + j)}, {s(srd_, 4)}, {so} offen offset:{1024 * j} {flag} lds", j)
        return fl

    def issue_upto(n):
        fl = []
        while Z["dma"] <= min(n, NB - 1):
            fl += dma_fillers(Z["dma"])
            Z["dma"] += 1
        return fl

    def areg(n, t, k=4, o2=0):
        b = blocks[n]
        if b["hold"] is None: return v(V_A + 16 * b["par"] + 4 * t + o2, k)
        if b["hold"] < 6: return a(A_HOLD + 16 * b["hold"] + 4 * t + o2, k)
        if b["hold"] == 6: return v(V_H6 + 4 * t + o2, k)
        if b["hold"] == 7: return v(V_PK + 4 * t + o2, k)
        assert b["hold"] == 8
        return v((V_PK + 16, V_PK + 20, V_DWQ, V_DK)[t] + o2, k)

    def a_reads(n, at=0):
        b = blocks[n]; ty = b["ty"]
        kind, k = b["slot"]
        fl = []
        def chk(): assert not b["coop"] or n in seen, n
        fl.append(F(chk, -1, at))
        def R(txt): fl.append(F(lambda: g(txt), 1, at))
        for t in range(4):
            if ty == "k":
                R(f"ds_read_b128 {areg(n, t)}, {v(V_NR + (t & 1))} offset:{k * 4096 + (t >> 1) * 2048}")
            else:
                if ty != "wo": ad, of = v(V_T + t), k * 4096
                elif kind == "r": ad, of = v(V_WO), k * 4096 + t * 16384
                else: ad, of = v(V_WO2), k * 16384 + t * 4096
                R(f"ds_read_b64_tr_b16 {areg(n, t, 2)}, {ad} offset:{of}")
                R(f"ds_read_b64_tr_b16 {areg(n, t, 2, 2)}, {ad} offset:{of + 2048}")
        def mark(): rtok[n] = g.last("lg")
        fl.append(F(mark, -1, at))
        return fl

    def wait_block(n, bar, at, also=None):
        def w(): g.wait(btok[n], rtok[also] if also is not None else None)
        fl = [F(w, 0, at, lambda: btok[n] is not None)]
        if bar: fl.append(F(barrier, 0, at))
        return fl

    def fetch(upto, at, qm, bar=False, mid=None, lim=999):
        fl = []
        n0 = Z["rd"]
        for n in range(n0, upto + 1):
            b = blocks[n]
            pc = n > n0 and blocks[n - 1]["coop"]
            need = (b["coop"] and n not in seen) or pc or (bar and n == upto)
            fl += wait_block(n, need, at, n - 1 if pc else None)
            if n == upto and mid: fl += mid
            fl += a_reads(n, at)
            if n > n0:
                d = issue_upto(min(n + 3, lim))
                for f in d: f.at = at; f.ok = (lambda qm=qm: not qm)
                fl += d
        Z["rd"] = max(n0, upto + 1)
        return fl

    xbump = [0]
    def b_reads(ty, i, at=0):
        B = V_B + 20 * (i & 1)
        fl = []
        def R(txt): fl.append(F(lambda: g(txt), 1, at))
        if ty == "wq":
            it, e = i >> 1, i & 1
            if it == 4 and e == 0:
                xbump[0] = 32768
                R(f"v_add_u32 {v(V_NX)}, 32768, {v(V_NX)}")
                R(f"v_add_u32 {v(V_NX + 1)}, 32768, {v(V_NX + 1)}")
            def chk(): assert xat[it] in seen, it
            fl.append(F(chk, -1, at))
            for rt in range(NT):
                R(f"ds_read_b128 {v(B + 4 * rt, 4)}, {v(V_NX + (e ^ r))} offset:{(it * NT + rt) * 2048 - xbump[0]}")
        else:
            half, idx, _ = pv[i]
            for rt in range(NT):
                R(f"ds_read_b128 {v(B + 4 * rt, 4)}, {v(V_F + half)} offset:{(idx * NT + rt) * 1024}")
        return fl

    def run(fl):
        for f in fl: f.fn()

    def sp(fl, lo=1, hi=None, ok=None):
        return spread(fl, lo, NM - 1 if hi is None else hi, ok)

    acc = lambda t, rt: V_ACC + 4 * (t * NT + rt)
    tord = lambda rt, ok: range(3, -1, -1) if (o.serp and ok and rt & 1) else range(4)

    if NT == 5:
        g(f"s_lshl_b32 {s(S_T)}, {s(S_W)}, 9")
        g(f"s_add_u32 m0, {s(S_T)}, 8192")
        run(x_fillers(0))
    btok[0] = g.last("vm")
    setup2(g, o)
    g.pending.clear()
    if NT == 4:
        g(f"s_lshl2_add_u32 {s(S_T)}, s2, {s(S_W)}")
        g(f"s_cmp_lg_u32 {s(S_T)}, 32")
        g("s_cbranch_scc1 L_noepoch")
        g(f"s_add_u32 {s(S_PF)}, {s(S_PTR + 14)}, {EP_OFF}")
        g(f"s_addc_u32 {s(S_PF + 1)}, {s(S_PTR + 15)}, 0")
        g(f"s_load_dword {s(S_T)}, {s(S_PF, 2)}, 0")
        g.raw("    s_waitcnt lgkmcnt(0)")
        g(f"s_add_u32 {s(S_T)}, {s(S_T)}, 2")
        g(f"s_or_b32 {s(S_T)}, {s(S_T)}, 1")
        g(f"v_mov_b32 {v(V_EP)}, {s(S_T)}")
        g(f"v_mov_b32 {v(V_PO)}, 0")
        g("s_mov_b64 exec, 1")
        g.raw(f"    global_store_dword {v(V_PO)}, {v(V_EP)}, {s(S_PTR + 12, 2)} sc1")
        g.raw(f"    global_store_dword {v(V_PO)}, {v(V_EP)}, {s(S_PF, 2)} sc1")
        g("s_mov_b64 exec, -1")
        g.label("L_noepoch")
    late_setup(g, NT, obase)
    if first:
        run(issue_upto(2))
    else:
        for it in xs.get(1, []): run(x_fillers(it))
    stamp(g, o, "iss")
    run(fetch(0, 0, [], True, b_reads("wq", 0)))
    stamp(g, o, "first")
    if not first:
        run(dma_fillers(1, False)); Z["dma"] = 2
    run(issue_upto(2))

    qb = []
    nk0 = src[("wq", 13)] + 1
    nks = src[("k", min(i for i in range(16) if i not in KH))]
    lastbar = 0
    for m in range(14):
        n = src[("wq", m)]
        B = V_B + 20 * (m & 1)
        g.wait(g.last("lg"))
        stamp(g, o, f"s{m}")
        mf = [mfma(v(acc(t, rt), 4), areg(n, t), v(B + 4 * rt, 4), m == 0) for rt in range(NT) for t in tord(rt, m < 13)]
        wat = NM - 8 - 3 - (0 if NT == 5 else 1)
        qm = sp(issue_upto(min(n + 4, nks + 1)))
        ql = []
        if m < 13:
            n1 = src[("wq", m + 1)]
            bar = (m & 1 and xat[(m + 1) >> 1] not in seen) or (m == 11 and lastbar < 7)
            if bar:
                lastbar = m
                ql = fetch(n1, 1, qm, True, b_reads("wq", m + 1, 1))
            else:
                ql = b_reads("wq", m + 1, 0) + fetch(n1, wat if n1 == n + 1 else 0, qm)
        else:
            if nks > nk0:
                sp(qm, 1, 4)
                ql = fetch(min(nk0 + 2, nks - 1), 0, qm)
            for rt in range(NT):
                for t in range(4):
                    c = acc(t, rt); pk_ = V_PK + 2 * ((rt * 4 + t) % 8)
                    at = rt * 4 + t + 4
                    for h2 in range(2):
                        qb.append(F(lambda c=c, h2=h2: g(f"v_pk_mul_f32 {v(c + 2 * h2, 2)}, {v(c + 2 * h2, 2)}, {s(S_SC, 2)}"), 1, at))
                    for h2 in range(2):
                        qb.append(F(lambda c=c, h2=h2, pk_=pk_: g(f"v_cvt_pk_bf16_f32 {v(pk_ + h2)}, {v(c + 2 * h2)}, {v(c + 2 * h2 + 1)}"), 1, at))
                    qb.append(F(lambda t=t, rt=rt, pk_=pk_: g(f"ds_write_b64 {v(V_QW)}, {v(pk_, 2)} offset:{((t >> 1) * NT + rt) * 1024 + (t & 1) * 512}"), 1, at))
        run_step(g, mf, qm, ql, qb, drain_b=(m == 13))
    if nks > nk0:
        run(issue_upto(Z["rd"] + 3))
        run(fetch(min(nk0 + 3, nks - 1), 0, []))
    else:
        run(issue_upto(nks + 2))
    g.wait(g.last("lg"))
    barrier()
    stamp(g, o, "q")

    BF = lambda ks, rt: a(4 * (ks * NT + rt), 4)
    sacc = lambda tile, rt: V_ACC + 20 * (tile & 1) + 4 * rt
    lacc = lambda rt: V_ACC + 40 + 4 * rt
    pk = lambda rt: V_ACC + 60 + 4 * rt

    def frag_reads(base):
        return [F(lambda ks=ks, rt=rt: g(f"ds_read_b128 {BF(ks, rt)}, {v(V_F + (1 if base else 0))} offset:{(ks * NT + rt) * 1024}"), 1, 0)
                for hb in range(2) for ks, rt in ([(4 * hb + kk, rt) for rt in range(NT) for kk in range(4)] if o.rt1 and (o.cfix or (hb and o.rtm))
                                                  else [(4 * hb + kk, rt) for kk in range(4) for rt in range(NT)])]

    def wo_warm(i0, nb):
        if o.warmh and r: return
        lg = 2 if o.warmh else 1
        t0, t1 = V_TMP + 2, V_TMP + 3
        g(f"v_add_u32 {v(t0)}, {i0 << lg}, v0")
        g(f"v_bfe_u32 {v(t1)}, {v(t0)}, {lg}, 1")
        g(f"v_lshlrev_b32 {v(t1)}, 7, {v(t1)}")
        g(f"v_and_or_b32 {v(t1)}, {v(t0)}, {(1 << lg) - 1}, {v(t1)}")
        g(f"v_mul_u32_u24 {v(t1)}, 896, {v(t1)}")
        g(f"v_lshrrev_b32 {v(t0)}, {lg + 1}, {v(t0)}")
        g(f"v_lshl_add_u32 {v(t0)}, {v(t0)}, 7, {v(t1)}")
        g(f"s_mul_i32 {s(S_T)}, {s(S_SH)}, {2 * 896}")
        nl = nb << lg
        if nl <= 31: g(f"s_mov_b64 exec, {hex((1 << nl) - 1)}")
        else: g(f"s_mov_b32 exec_hi, {hex((1 << (nl - 32)) - 1)}")
        g(f"buffer_load_dword {v(V_TMP + 1)}, {v(t0)}, {s(SRD_WO, 4)}, {s(S_T)} offen")
        g("s_mov_b64 exec, -1")
        g.pending.pop(("v", V_TMP + 1))
    def code_warm(step):
        t0 = V_TMP + 2
        g(f"s_getpc_b64 {s(S_PF, 2)}")
        g.label(f"L_pc{step}_{tag}")
        g(f"s_lshr_b32 {s(S_T)}, s2, 4")
        g(f"s_lshl2_add_u32 {s(S_T)}, {s(S_T)}, {s(S_W)}")
        g(f"s_lshr_b32 {s(S_T)}, {s(S_T)}, 1")
        g(f"v_lshl_add_u32 {v(t0)}, v0, 5, {s(S_T)}")
        g(f"v_lshlrev_b32 {v(t0)}, 7, {v(t0)}")
        g(f"v_min_u32 {v(t0)}, L_end_{tag}-L_pc{step}_{tag}, {v(t0)}")
        g("s_mov_b64 exec, 15")
        g(f"global_load_dword {v(V_TMP + 1)}, {v(t0)}, {s(S_PF, 2)}")
        g("s_mov_b64 exec, -1")
        g.pending.pop(("v", V_TMP + 1))
    cpf_at = [int(x) for x in o.cpf.split(",")]
    def warm_f(step):
        k = warm_at.index(step)
        i0, nb = (0, 14) if len(warm_at) == 1 else ((0, WH), (WH, 14 - WH))[k]
        return F(lambda: wo_warm(i0, nb), 2)
    warm_at = [int(x) for x in o.wopf.split(",")]

    def softmax_fillers(tile, at):
        fl = []
        odd = tile & 1
        pi = tile >> 1
        half, idx = pgroup(pi)
        late = []
        for rt in range(NT):
            c = sacc(tile, rt)
            off = (idx * 4 * NT + rt) * 1024
            for i in range(4):
                fl.append(F(lambda c=c, i=i: g(f"v_exp_f32 {v(c + i)}, {v(c + i)}"), 2, at(rt)))
                if i == 1: fl += late; late = []
            for h2 in range(2):
                fl.append(F(lambda c=c, h2=h2, rt=rt: g(f"v_cvt_pk_bf16_f32 {v(pk(rt) + 2 * odd + h2)}, {v(c + 2 * h2)}, {v(c + 2 * h2 + 1)}"), 1, at(rt)))
            if odd:
                late.append(F(lambda rt=rt: g(mfma(v(lacc(rt), 4), v(V_ONE, 4), v(pk(rt), 4), pi == 0)), 3, 0))
            if o.pw == "b64":
                late.append(F(lambda rt=rt, off=off: g(f"ds_write_b64 {v(V_PW + half)}, {v(pk(rt) + 2 * odd, 2)} offset:{off + 8 * odd}"), 2, 0))
            elif odd:
                late.append(F(lambda rt=rt, off=off: g(f"ds_write_b128 {v(V_PW + half)}, {v(pk(rt), 4)} offset:{off}"), 2, 0))
        return fl + late

    def tile_steps(ty, nsteps, sbase, fr, epi, plan, mid=None):
        qb = []
        done = 0
        for m in range(nsteps):
            n = src[(ty, m)]
            tile, hb = m >> 1, m & 1
            g.wait(rtok[n])
            stamp(g, o, f"s{sbase + m}")
            rtm = o.rtm and hb == 1 and (m > 1 or o.rt1)
            cf = rtm or (o.cfix and (m > 1 or o.rt1))
            order = [(kk, rt) for rt in range(NT) for kk in range(4)] if cf else [(kk, rt) for kk in range(4) for rt in range(NT)]
            mf = [mfma(v(sacc(tile, rt), 4), areg(n, kk), BF(4 * hb + kk, rt), hb == 0 and kk == 0) for kk, rt in order]
            qm, ql = plan(m, n)
            if m < 2:
                k = NM if m == 0 else len(fr)
                qb = fr[:k]; del fr[:k]
                if rtm:
                    qb += epi(0, lambda rt: 4 * rt + 7); done = 1
                run_step(g, mf, qm, ql, qb, drain_b=not rtm, b_first=True)
            else:
                if hb == 0 and done < tile:
                    qb += epi(tile - 1, lambda rt: 2); done = tile
                nold = len(qb)
                if rtm:
                    qb += epi(tile, lambda rt: 4 * rt + 7); done = tile + 1
                nnew = len(qb) - nold
                run_step(g, mf, qm, ql, qb)
                while hb == 1 and len(qb) > nnew: qb.pop(0).fn()
        if done < nsteps // 2: qb += epi(nsteps // 2 - 1, lambda rt: 0)
        if mid: mid(qb)
        run(qb)

    def plan_k(m, n):
        n1 = src[("k", m + 1)] if m < 15 else src[("v", 0)]
        wat = NM - (o.kwat if m < 15 else max(11, o.kwat))
        qm = issue_upto(Z["rd"] - 1 + (4 if KH and m <= max(KH) else o.kd))
        if 14 + m in warm_at: qm.insert(0, warm_f(14 + m))
        if 14 + m in cpf_at: qm.insert(0, F(lambda: code_warm(14 + m), 2))
        sp(qm, 1, min(o.khi, NM - 1))
        ql = [F(barrier, 0, 0)] if m == 7 else []
        if m == 0 and nks > nk0: ql += fetch(nks - 1, 2, qm)
        if n1 >= Z["rd"]: ql += fetch(n1, wat, qm)
        return qm, ql

    LOOK = 10
    fr = frag_reads(0)
    run(fr[:LOOK]); del fr[:LOOK]
    if not KH: run(fetch(nks, 0, []))
    def t2_loads(qb):
        v0 = src[("v", 0)]
        if o.t2x >= 2 and blocks[v0 + 1]["ty"] == "v":
            qb[4:4] = fetch(v0 + 1, 0, [])
        if o.t2x >= 1:
            d = issue_upto(v0 + 4)
            n0 = len(qb)
            for j, f in enumerate(d):
                qb.insert(min(len(qb), max(0, (j - len(d) + 5)) * n0 // 5 + j), f)
    tile_steps("k", 16, 14, fr, softmax_fillers, plan_k, t2_loads)

    def write_l():
        for rt in range(NT):
            g(f"ds_write_b32 {v(V_LW)}, {v(lacc(rt))} offset:{rt * 256}")
    write_l()
    run(issue_upto(Z["rd"] + 2))
    g.wait(g.last("lg"))
    barrier()
    if o.t2x: run(issue_upto(Z["rd"] + 3))
    stamp(g, o, "p")

    g.label(f"L_pv_{tag}")
    for rt in range(NT):
        g(f"ds_read_b128 {v(V_PK + 4 * rt, 4)}, {v(V_LR)} offset:{rt * 256}")
    run(b_reads("v", 0))
    for rt in range(NT):
        p = V_PK + 4 * rt
        g(f"v_add_f32 {v(p)}, {v(p)}, {v(p + 1)}")
        g(f"v_add_f32 {v(p + 2)}, {v(p + 2)}, {v(p + 3)}")
        g(f"v_add_f32 {v(V_LS + rt)}, {v(p)}, {v(p + 2)}")
        g(f"v_rcp_f32 {v(V_RI + rt)}, {v(V_LS + rt)}")
    g(f"v_max_f32 {v(V_TMP)}, {v(V_LS)}, {v(V_RI)}")
    for rt in range(1, NT):
        g(f"v_max3_f32 {v(V_TMP)}, {v(V_TMP)}, {v(V_LS + rt)}, {v(V_RI + rt)}")
    g(f"v_cmp_lt_f32 vcc, {f32(2.0 ** 60)}, {v(V_TMP)}")
    g.nop(2)
    g(f"s_cbranch_vccz L_pvgo_{tag}")
    g(f"s_cmp_eq_u32 {s(S_FLAG)}, 0")
    g(f"s_cbranch_scc1 L_slow_{tag}")
    g.label(f"L_pvgo_{tag}")
    qb = []
    nv = src[("v", 15)]
    assert not WH or wpos <= 11
    wplan = [int(x) for x in o.wplan.split(",")]
    for m in range(16):
        n = src[("v", m)]
        B = V_B + 20 * (m & 1)
        g.wait(g.last("lg"))
        stamp(g, o, f"s{30 + m}")
        mf = [mfma(v(acc(t, rt), 4), areg(n, t), v(B + 4 * rt, 4), m == 0) for rt in range(NT) for t in tord(rt, m < 15)]
        wat = NM - 8 - 3 - (0 if NT == 5 else 1)
        if m >= 15 - o.latew: wat = NM - 1
        ql = []
        if m == 12: ql.append(F(barrier, 0, 0))
        if m == 1:
            qb += fuse_setup(g, o, NT)
        qm = issue_upto({12: nv, 13: nv, 14: nv + wplan[0], 15: nv + wplan[1]}.get(m, n + 4))
        if 30 + m in warm_at: qm.insert(0, warm_f(30 + m))
        if 30 + m in cpf_at: qm.insert(0, F(lambda m=m: code_warm(30 + m), 2))
        sp(qm)
        if m < 15:
            n1 = src[("v", m + 1)]
            if n1 > n + 1: sp(qm, 1, 4); wat = 3
            ql += b_reads("v", m + 1, 0) + fetch(n1, wat, qm)
        else:
            for rt in range(NT):
                for p in range(2):
                    pkr = acc(2 * p, rt)
                    at = rt * 4 + 2 * p + 4
                    for t in (2 * p, 2 * p + 1):
                        c = acc(t, rt)
                        for h2 in range(2):
                            qb.append(F(lambda c=c, h2=h2, t=t, pkr=pkr: g(f"v_cvt_pk_bf16_f32 {v(pkr + 2 * (t & 1) + h2)}, {v(c + 2 * h2)}, {v(c + 2 * h2 + 1)}"), 1, at))
                    qb.append(F(lambda p=p, rt=rt, pkr=pkr: g(f"ds_write_b128 {v(V_OW)}, {v(pkr, 4)} offset:{(p * NT + rt) * 1024}"), 1, at))
        run_step(g, mf, qm, ql, qb, drain_b=(m == 15))
    run(issue_upto(nv + wplan[2]))
    g(f"s_lshl_b32 {s(S_T2)}, {s(S_W)}, 10")
    g(f"s_lshl_b32 {s(S_XM)}, {s(S_W)}, 12")
    g(f"v_cmp_eq_u32 vcc, 0, {v(V_EP)}")
    g.wait(None if WH else btok[nv + 1], g.last("lg"))
    barrier()
    stamp(g, o, "o")

    ends = [int(x) for x in o.fgrp.split(",")]
    held = []
    sbs = [int(c) for c in o.sb] if not WH else []
    def out_fillers(st, at):
        fl = []
        base = V_B + 12 * (st % (6 if sbs else 3))
        dst = held if sbs and st <= max(sbs) else fl
        for rt in range(NT):
            c = sacc(st, rt)
            for i in range(4):
                fl.append(F(lambda c=c, i=i, rt=rt: g(f"v_mul_f32 {v(c + i)}, {v(c + i)}, {v(V_RI + rt)}"), 1, at(rt)))
            for h2 in range(2):
                fl.append(F(lambda c=c, h2=h2, rt=rt: g(f"v_cvt_pk_bf16_f32 {v(base + 2 * rt + h2)}, {v(c + 2 * h2)}, {v(c + 2 * h2 + 1)}"), 1, at(rt)))
            if rt in (1, 3):
                pidx = 2 * r + (rt >> 1)
                def stx4(rt=rt, pidx=pidx):
                    g(f"s_add_u32 {s(S_ST)}, {s(S_T2)}, {(pidx * 28 + 4 * st) * 1024}")
                    stok[st] = g(f"buffer_store_dwordx4 {v(base + 2 * (rt - 1), 4)}, {v(V_F)}, {s(SRD_P, 4)}, {s(S_ST)} offen {o.stflag}")
                dst.append(F(stx4, 1 if dst is fl else 2, 0))
            if rt == 4:
                def stx2():
                    g(f"s_add_u32 {s(S_ST)}, {s(S_T2)}, {(112 + 4 * (st >> 1)) * 1024 + (st & 1) * 512}")
                    stok[st] = g(f"buffer_store_dwordx2 {v(base + 8, 2)}, {v(V_L8)}, {s(SRD_P, 4)}, {s(S_ST)} offen {o.stflag}")
                dst.append(F(stx2, 1 if dst is fl else 2, 0))
        if st in sbs:
            fl += held; held.clear()
        for e in ends:
            e2 = min([x for x in sbs if x >= e] + [e if not sbs or e > max(sbs) else 9])
            if e < 6 and min(e2 + o.flagd, 6) == st: fl.append(F(lambda e=e: flag(e), 2, 2))
        return fl

    def flag(st):
        g.wait(stok[st])
        g("s_mov_b64 exec, 1")
        g(f"buffer_atomic_swap {v(V_EP)}, off, {s(SRD_WS, 4)}, {s(S_FW)} offset:{128 * st} sc1")
        g("s_mov_b64 exec, -1")

    def poll_issue(dst, mask):
        g(f"s_mov_b32 exec_lo, {mask}")
        g("s_mov_b32 exec_hi, 0")
        g(f"v_mov_b32 {v(dst)}, 0")
        t = g(f"buffer_atomic_or {v(dst)}, {v(V_L4)}, {s(SRD_WS, 4)}, {s(S_FR)} offen sc0 sc1")
        return t
    def early_poll():
        Z["ptok"] = poll_issue(V_TMP, "0xffff")
        g("s_mov_b64 exec, -1")

    def plan_o(m, n):
        qm, ql = plan_o2(m, n)
        if m == o.early and o.earlyr >> r & 1: qm.append(F(early_poll, 2, NM // 2))
        return qm, ql

    def plan_o2(m, n):
        if m == 13: return [], []
        n1 = src[("wo", m + 1)]
        if WH:
            qm = sp(issue_upto(nv + wplan[min(3 + m, len(wplan) - 1)]))
            ql = []
            if m == WH - 1: ql = [F(lambda: g.wait(btok[min(nv + o.wfirst, NB - 1)]), 0, 1)]
            if m == WH - 1 + o.wfirst: ql = [F(lambda: g.wait(btok[NB - 1]), 0, 1)]
            if m >= WH - 1: ql += fetch(n1, 1, qm)
            return qm, ql
        if o.x_w >> r & 1 and m >= 3:
            seen.add(n1); return [], a_reads(n1, 1)
        ql = fetch(n1, 1, [], True)
        qm = sp(issue_upto(n + 4), 2, None, lambda: n in free)
        return qm, ql

    if not WH: run(fetch(nv + 1, 0, []))
    fr = frag_reads(obase)
    run(fr[:LOOK]); del fr[:LOOK]
    if not WH: run(issue_upto(nv + 4))
    g(f"s_cbranch_vccnz L_ep_{tag}")
    g.label(f"L_epok_{tag}")
    tile_steps("wo", 14, 46, fr, out_fillers, plan_o)
    stamp(g, o, "out")

    D = 64
    def reads():
        g(f"s_mov_b32 exec_hi, {s(S_XH)}")
        for h in range(16):
            g(f"buffer_load_dwordx4 {v(D + 4 * h, 4)}, {v(V_F)}, {s(SRD_WS, 4)}, {s(S_RD)} offen {o.rdflag}")
            if h < 15: g(f"s_add_u32 {s(S_RD)}, {s(S_RD)}, {SLAB}")
    if o.early < 14 and o.earlyr >> r & 1:
        g.wait(Z["ptok"])
        g(f"v_cmp_eq_u32 vcc, {v(V_TMP)}, {v(V_EP)}")
        g.nop(1)
        g(f"s_and_b32 {s(S_T)}, vcc_lo, 0xffff")
        g(f"s_cmp_lg_u32 {s(S_T)}, 0xffff")
        g(f"s_cbranch_scc1 L_late_{tag}")
        snap = g.snapshot()
        stamp(g, o, "poll")
        reads()
        flag(6)
        stamp(g, o, "flag")
        g(f"s_mov_b32 exec_hi, {s(S_XH)}")
        g(f"s_branch L_sum_{tag}")
        g.label(f"L_late_{tag}")
        g.restore(snap)
    flag(6)
    stamp(g, o, "flag")
    g(f"s_mov_b32 {s(S_CNT)}, 0x100000")
    g(f"s_mov_b32 {s(S_T3)}, 0xffff")
    if o.exp == 1: g(f"s_branch L_exp1_{tag}")
    g.label(f"L_poll_{tag}")
    poll_issue(V_TMP, s(S_T3))
    g(f"s_sub_u32 {s(S_CNT)}, {s(S_CNT)}, 1")
    g(f"s_cbranch_scc1 L_k1_end")
    g.wait_all(lg=False, force=True)
    g(f"v_cmp_eq_u32 vcc, {v(V_TMP)}, {v(V_EP)}")
    g("s_mov_b32 exec_lo, -1")
    if o.dyn >> r & 1:
        g(f"s_mov_b32 exec_hi, {s(S_XH)}")
        g(f"s_and_b32 {s(S_T)}, vcc_lo, {s(S_T3)}")
        g(f"s_cbranch_scc0 L_poll_{tag}")
        g(f"s_xor_b32 {s(S_T3)}, {s(S_T3)}, {s(S_T)}")
        for h in range(16):
            if h % 4 == 0:
                g(f"s_and_b32 {s(S_T2)}, {s(S_T)}, {15 << h}")
                g(f"s_cbranch_scc0 L_skip{h + 3}_{tag}")
            g(f"s_bitcmp1_b32 {s(S_T)}, {h}")
            g(f"s_cbranch_scc0 L_skip{h}_{tag}")
            g(f"s_add_u32 {s(S_ST)}, {s(S_RD)}, {h * SLAB}")
            g(f"buffer_load_dwordx4 {v(D + 4 * h, 4)}, {v(V_F)}, {s(SRD_WS, 4)}, {s(S_ST)} offen {o.rdflag}")
            g.label(f"L_skip{h}_{tag}")
        g(f"s_cmp_lg_u32 {s(S_T3)}, 0")
        g(f"s_cbranch_scc1 L_poll_{tag}")
        stamp(g, o, "poll")
        g(f"s_waitcnt vmcnt(0)")
    else:
        g.nop(1)
        g(f"s_andn2_b32 {s(S_T3)}, {s(S_T3)}, vcc_lo")
        g(f"s_cbranch_scc1 L_poll_{tag}")
        stamp(g, o, "poll")
        reads()
    g.label(f"L_sum_{tag}")
    g(f"s_mov_b32 {s(S_T)}, 0x00003f80")
    g(f"s_mov_b32 {s(S_T2)}, 0x3f800000")
    C = V_A
    for h in range(16):
        for i in range(4):
            src = D + 4 * h + i
            if h == 0:
                g(f"v_lshlrev_b32 {v(C + 2 * i)}, 16, {v(src)}")
                g(f"v_and_b32 {v(C + 1 + 2 * i)}, 0xffff0000, {v(src)}")
            else:
                g(f"v_dot2c_f32_bf16 {v(C + 2 * i)}, {s(S_T)}, {v(src)}")
                g(f"v_dot2c_f32_bf16 {v(C + 2 * i + 1)}, {s(S_T2)}, {v(src)}")
    g.nop(3)
    for i in range(4):
        g(f"v_cvt_pk_bf16_f32 {v(C + 12 + i)}, {v(C + 2 * i)}, {v(C + 1 + 2 * i)}")
    g(f"buffer_store_dwordx2 {v(C + 12, 2)}, {v(V_OA)}, {s(SRD_OUT, 4)}, 0 offen {o.outflag}")
    g(f"buffer_store_dwordx2 {v(C + 14, 2)}, {v(V_OA + 1)}, {s(SRD_OUT, 4)}, 0 offen {o.outflag}")
    g.label(f"L_exp1_{tag}")
    stamp(g, o, "sum")
    if o.stamps:
        g.wait_all(force=True)
        stamp(g, o, "drain")
        g("s_waitcnt lgkmcnt(0)")
        g(f"s_lshl2_add_u32 {s(S_T)}, s2, {s(S_W)}")
        g(f"s_lshl_b32 {s(S_T)}, {s(S_T)}, 7")
        g(f"s_add_u32 {s(S_T)}, {s(S_T)}, {STAMP_OFF}")
        g(f"v_mov_b32 v1, 0")
        for i in range(len(o.slist.split(','))):
            g(f"v_mov_b32 v2, {s(S_STAMP + 2 * i)}")
            g(f"v_mov_b32 v3, {s(S_STAMP + 2 * i + 1)}")
            g(f"buffer_store_dwordx2 v[2:3], v1, {s(SRD_WS, 4)}, {s(S_T)} offen offset:{8 * i}")
            g.nop(2)
    g.label(f"L_end_{tag}")
    g("s_endpgm")
    yield

    g.label(f"L_ep_{tag}")
    g.reset_state()
    g(f"s_mov_b32 {s(S_CNT)}, 0x100000")
    g(f"v_mov_b32 {v(V_TMP)}, 0")
    g.label(f"L_ep2_{tag}")
    g(f"global_load_dword {v(V_EP)}, {v(V_TMP)}, {s(S_PTR + 12, 2)} sc1")
    g.wait_all(lg=False, force=True)
    g(f"s_sub_u32 {s(S_CNT)}, {s(S_CNT)}, 1")
    g(f"s_cbranch_scc1 L_epok_{tag}")
    g(f"v_cmp_eq_u32 vcc, 0, {v(V_EP)}")
    g.nop(2)
    g(f"s_cbranch_vccnz L_ep2_{tag}")
    g(f"s_branch L_epok_{tag}")

    g.label(f"L_slow_{tag}")
    g.reset_state()
    KF = 208
    VK = V_TMP + 1
    VM = V_LS
    VP = V_TMP + 2
    g.wait_all(force=True)
    g.nop(8)
    g("s_barrier")
    g(f"s_mov_b32 {s(S_FLAG)}, 1")
    g(f"v_and_b32 {v(VK)}, 15, v0")
    g(f"v_lshlrev_b32 {v(VK)}, 9, {v(VK)}")
    g(f"v_lshrrev_b32 {v(V_TMP)}, 4, v0")
    g(f"v_lshl_add_u32 {v(VK)}, {v(V_TMP)}, 4, {v(VK)}")
    g(f"s_and_b32 {s(S_T)}, {s(S_H)}, {1 if o.ph == 2 else 0}")
    g(f"s_lshl_b32 {s(S_T)}, {s(S_T)}, 12")
    g(f"v_xor_b32 {v(VK)}, {s(S_T)}, {v(VK)}")
    g(f"v_add_u32 {v(VK)}, {BIAS}, {v(VK)}")
    for rt in range(NT):
        g(f"v_mov_b32 {v(VM + rt)}, 0xff800000")

    def slow_tile(par):
        for ks in range(8):
            g(f"buffer_load_dwordx4 {v(KF + 4 * ks, 4)}, {v(VK)}, {s(SRD_K, 4)}, {s(S_SO)} offen offset:{64 * ks}")
        for ks in range(8):
            for rt in range(NT):
                g(mfma(v(sacc(par, rt), 4), v(KF + 4 * ks, 4), BF(ks, rt), ks == 0))
    g(f"s_mov_b32 {s(S_SO)}, 0")
    g.label(f"L_slow1_{tag}")
    slow_tile(0)
    for rt in range(NT):
        c = sacc(0, rt)
        g(f"v_max3_f32 {v(VM + rt)}, {v(VM + rt)}, {v(c)}, {v(c + 1)}")
        g(f"v_max3_f32 {v(VM + rt)}, {v(VM + rt)}, {v(c + 2)}, {v(c + 3)}")
    g(f"s_add_u32 {s(S_SO)}, {s(S_SO)}, 8192")
    g(f"s_cmp_lt_u32 {s(S_SO)}, 65536")
    g(f"s_cbranch_scc1 L_slow1_{tag}")
    for rt in range(NT):
        m = VM + rt
        for op in ("v_permlane32_swap_b32", "v_permlane16_swap_b32"):
            g(f"v_mov_b32 {v(V_TMP)}, {v(m)}")
            g(f"{op} {v(V_TMP)}, {v(m)}")
            g.nop(2)
            g(f"v_max_f32 {v(m)}, {v(m)}, {v(V_TMP)}")
        g(f"ds_write_b32 {v(V_LW)}, {v(m)} offset:{2048 + rt * 256}")
    g.wait_all(force=True)
    g("s_barrier")
    for rt in range(NT):
        p = V_B + 4 * rt
        g(f"ds_read_b128 {v(p, 4)}, {v(V_LR)} offset:{2048 + rt * 256}")
        g(f"v_max3_f32 {v(p)}, {v(p)}, {v(p + 1)}, {v(p + 2)}")
        g(f"v_max_f32 {v(VM + rt)}, {v(p)}, {v(p + 3)}")
    for rt in range(NT):
        for i in range(4):
            g(f"v_mov_b32 {v(lacc(rt) + i)}, 0")
    g(f"s_mov_b32 {s(S_CNT)}, 0")
    g.label(f"L_slow2_{tag}")
    for pi in range(4):
        half, idx = pgroup(pi)
        g(f"s_cmp_eq_u32 {s(S_CNT)}, {pi}")
        g(f"s_cselect_b32 {s(S_SO)}, {ktiles[2 * pi] * 8192}, {s(S_SO)}")
        g(f"s_cselect_b32 {s(S_T)}, {half * HALF + idx * 4 * NT * 1024}, {s(S_T)}")
    g(f"s_xor_b32 {s(S_SO)}, {s(S_SO)}, {s(S_KX)}")
    g(f"v_add_u32 {v(VP)}, {s(S_T)}, {v(V_PW)}")
    for par in range(2):
        slow_tile(par)
        if par == 0:
            g(f"s_xor_b32 {s(S_SO)}, {s(S_SO)}, 8192")
        for rt in range(NT):
            c = sacc(par, rt)
            for i in range(4):
                g(f"v_sub_f32 {v(c + i)}, {v(c + i)}, {v(VM + rt)}")
            for i in range(4):
                g(f"v_exp_f32 {v(c + i)}, {v(c + i)}")
            for h2 in range(2):
                g(f"v_cvt_pk_bf16_f32 {v(pk(rt) + 2 * par + h2)}, {v(c + 2 * h2)}, {v(c + 2 * h2 + 1)}")
    for rt in range(NT):
        g(f"ds_write_b128 {v(VP)}, {v(pk(rt), 4)} offset:{rt * 1024}")
        g(mfma(v(lacc(rt), 4), v(V_ONE, 4), v(pk(rt), 4), False))
    g(f"s_add_u32 {s(S_CNT)}, {s(S_CNT)}, 1")
    g(f"s_cmp_lt_u32 {s(S_CNT)}, 4")
    g.nop(8)
    g(f"s_cbranch_scc1 L_slow2_{tag}")
    write_l()
    g.wait_all(force=True)
    g.nop(8)
    g("s_barrier")
    g(f"s_branch L_pv_{tag}")


HEAD = """; Fused MHA block: out = softmax((x wq) K^T / 16) V wo   (B=8, Sq=144, D=448, H=16, Sk=512, Dh=256, bf16)
; kernarg: x@0 k_cache@8 v_cache@16 wq@24 wo@32 out@40 debug@48 ws@56
; One workgroup per (batch, head, row half): q-projection, attention and that head's share of the output
; projection; the per-head partial outputs are handed over through ws and summed by the same workgroups.
"""


KN = "standalone__mha_block_cached__near_ridge_kernel"


def build(o):
    g = Gen()
    g.raw(HEAD.rstrip())
    g.raw(f"; @launch grid=(256,1,1) block=(256,1,1) lds={LDS_BYTES}")
    g.raw(f'.amdgcn_target "amdgcn-amd-amdhsa--gfx950"\n.text\n.globl {KN}\n.p2align 8\n.type {KN},@function')
    g.label(KN)
    prologue(g, o)
    g(f"s_cmp_eq_u32 {s(S_R)}, 1")
    g("s_cbranch_scc1 L_light")
    snap = g.snapshot()
    bh = body(g, o, 5, "h"); next(bh)
    g.raw(".p2align 6")
    g.label("L_light")
    g.restore(snap)
    bl = body(g, o, 4, "l"); next(bl)
    g.label("L_main_end")
    for b in (bh, bl):
        for _ in b: pass
    g.label("L_k1_end")
    g("s_endpgm")
    g.raw(kd(KN, 512, 256))
    return g


if __name__ == "__main__":
    o = Opt()
    out = sys.argv[1]
    for kv in sys.argv[2:]:
        k, _, val = kv.partition("=")
        cur = getattr(o, k)
        if isinstance(cur, bool): val = val in ("1", "true", "True")
        elif isinstance(cur, int): val = int(val)
        else: val = val.replace("+", " ")
        setattr(o, k, val)
    g = build(o)
    open(out, "w").write(g.text())
    print(out, "instrs", g.ninstr, "nops", g.nnops, file=sys.stderr)
```

```python
import sys, struct, math
from asmgen import Gen, v, a, s, kd, Tok

WS = 268435456
STAMP_OFF = WS - (4 << 20)
SLAB = 128 * 1024
FLAG_OFF = 16 << 20
EP_OFF = FLAG_OFF + (256 << 10)
HALF = 49152
BIAS = 3072
LDS_X = 40960
LDS_L = 90112
LDS_RING = 94208
LDS_BYTES = LDS_RING + 4 * 16384

def f32(x): return "0x%08x" % struct.unpack("<I", struct.pack("<f", x))[0]

S_W = 3
SRD_X, SRD_K, SRD_V, SRD_WQ, SRD_WO, SRD_P = 4, 8, 12, 16, 20, 24
S_RING = 28
S_B, S_H, S_R = 32, 33, 34
S_T = 35
S_PTR = 36
S_SO = 36
S_XM = 37
S_XM3 = 38
S_FLAG = 39
S_FW = 40
S_FR = 41
S_RD = 42
S_XH = 43
S_PF = 44
SRD_WS, SRD_OUT = SRD_X, SRD_WQ
S_XO = 52
S_WQO = 59
S_WB = 60
S_RD2 = 61
S_SH = 73
S_SC = 74
S_T2 = 76
S_T3 = 77
S_ST = 78
S_CNT = 79
S_KX = 1
S_VX = 0
S_STAMP = 80

V_T = 1
V_WO = 5
V_NR = 6
V_NX = 8
V_F = 10
V_QW = 12
V_LW = 13
V_LR = 14
V_PW = 15
V_OW = 17
V_DWQ = 18
V_DK = 22
V_DV = 26
V_DWO = 30
V_DX = 34
V_L8 = 37
V_TMP = 38
V_ONE = 44
V_ACC = 48
V_A = 128
V_B = 160
V_PK = 200
V_RI = 240
V_LS = 245
V_EP = 250
V_OA = 251
V_PO = 253
V_L4 = 254
V_WO2 = 255
V_H6 = 224
A_HOLD = 160


class Opt:
    stamps = False
    cyc = False
    slist = "start,first,q,p,o,out,flag,poll,sum,drain"
    kflag = ""
    knt = 99
    vflag = ""
    wqflag = ""
    woflag = ""
    xflag = ""
    stflag = "sc1"
    rdflag = "sc1"
    outflag = "sc1"
    codepf = True
    wopf = "30,38"
    flagd = 1
    xs = "0:0,1:123,5:4,6:5,7:6"
    alt = False
    fgrp = "3,6"
    dyn = 0
    swap = False
    earlyr = 3
    warmf = True
    exp = 0
    tlb = False
    khold = 3
    whold = 8
    wpos = "4,13"
    kd = 4
    skew = 0
    skb = 0
    x_ps = 0
    wl = 5
    rewarm = False
    xpf = True
    xsl = "0:0,2:1,4:2,6:3,8:4,10:5,12:6"
    dot = True
    f2 = False
    mixw = False
    pol = 3
    pstep = 4
    pmarg = 2
    sb = ""
    t2x = 2
    cfix = True
    serp = True
    rt1 = True
    npoll = 1
    pgap = 7
    wfirst = 6
    mix = False
    early = 99
    full = True
    warmo = 0
    pw = "b128"
    kwat = 8
    x_w = 0
    warmh = False
    cpf = "33"
    kh = "0145"
    rtm = True
    wplan = "1,2,3,4,5,6,7"
    wafter = True
    x_hit = False
    ph = 2
    latew = 2
    spread = True
    pace1 = True
    pace2 = True
    pace3 = True
    khi = 19
    x_nobar = False
    x_nodma = False
    x_nost = False
    x_noepi = False


def stamp(g, o, name):
    if o.stamps:
        names = o.slist.split(",")
        if name in names:
            i = names.index(name)
            g(f"{'s_memtime' if o.cyc else 's_memrealtime'} {s(S_STAMP + 2 * i, 2)}")


def srd(g, dst, ptr, off, total, bias=0):
    if bias:
        g(f"s_sub_u32 {s(ptr)}, {s(ptr)}, {bias}")
        g(f"s_subb_u32 {s(ptr + 1)}, {s(ptr + 1)}, 0")
    g(f"s_add_u32 {s(dst)}, {s(ptr)}, {s(off)}")
    g(f"s_addc_u32 {s(dst + 1)}, {s(ptr + 1)}, 0")
    g(f"s_sub_u32 {s(dst + 2)}, {total + bias}, {s(off)}")
    g(f"s_mov_b32 {s(dst + 3)}, 0x20000")


def prologue(g, o):
    stamp(g, o, "start")
    g("s_cmp_ge_u32 s2, 256")
    g("s_cbranch_scc1 L_k1_end")
    g(f"s_load_dwordx16 {s(S_PTR, 16)}, s[0:1], 0")
    g("v_lshrrev_b32 v1, 6, v0")
    g("v_and_b32 v0, 63, v0")
    g(f"v_readfirstlane_b32 {s(S_W)}, v1")
    q, pos, t0, t1, t2, t3 = range(V_TMP, V_TMP + 6)
    g(f"v_lshrrev_b32 {v(q)}, 3, v0")
    g(f"v_and_b32 {v(pos)}, 7, v0")
    g(f"s_bfe_u32 {s(S_R)}, s2, 0x10003")
    g(f"s_bfe_u32 {s(S_B)}, s2, 0x30004")
    g(f"s_lshr_b32 {s(S_T2)}, s2, 7")
    g(f"s_and_b32 {s(S_H)}, s2, 7")
    g(f"s_lshl1_add_u32 {s(S_H)}, {s(S_H)}, {s(S_T2)}")
    g(f"s_bfe_u32 {s(S_SH)}, s2, 0x40003")
    g(f"s_mul_i32 {s(S_T2)}, {s(S_T2)}, 3")
    g(f"s_add_u32 {s(S_T)}, {s(S_B)}, {s(S_T2)}")
    g(f"s_cmp_ge_u32 {s(S_T)}, 7")
    g(f"s_cselect_b32 {s(S_T2)}, 7, 0")
    g(f"s_sub_u32 {s(S_CNT)}, {s(S_T)}, {s(S_T2)}")
    g(f"s_lshl_b32 {s(S_XO)}, {s(S_CNT)}, 7")
    g(f"s_lshl1_add_u32 {s(S_T)}, {s(S_CNT)}, {s(S_R)}")
    g(f"s_lshl_b32 {s(S_WQO)}, {s(S_T)}, 18")
    g(f"s_lshl_b32 {s(S_T)}, {s(S_W)}, 14")
    g(f"s_add_u32 {s(S_RING)}, {s(S_T)}, {LDS_RING}")
    g(f"v_and_b32 {v(t3)}, 6, {v(q)}")
    g(f"v_xor_b32 {v(t3)}, {v(t3)}, {v(pos)}")
    g(f"v_lshlrev_b32 {v(t3)}, 4, {v(t3)}")
    g(f"v_and_b32 {v(t1)}, 4, {v(q)}")
    g(f"v_add_u32 {v(t1)}, {v(t1)}, {v(q)}")
    g(f"v_lshl_add_u32 {v(V_DWQ)}, {v(t1)}, 13, {v(t3)}")
    for j, kb in enumerate([0, 16, 4, 20]):
        if j: g(f"v_add_u32 {v(V_DWQ + j)}, {kb * 8192 - 1024 * j}, {v(V_DWQ)}")
    g(f"v_mul_u32_u24 {v(t1)}, 896, {v(q)}")
    g(f"v_lshrrev_b32 {v(t0)}, 1, {v(q)}")
    g(f"v_xor_b32 {v(t0)}, {v(t0)}, {v(pos)}")
    g(f"v_lshlrev_b32 {v(t0)}, 4, {v(t0)}")
    g(f"v_xor_b32 {v(t2)}, 64, {v(t0)}")
    g(f"s_mul_i32 {s(S_T)}, {s(S_W)}, {16 * 896}")
    g(f"v_add3_u32 {v(V_DX)}, {v(t1)}, {v(t0)}, {s(S_T)}")
    g(f"s_add_u32 {s(S_T)}, {s(S_T)}, {8 * 896 - 1024}")
    g(f"v_add3_u32 {v(V_DX + 1)}, {v(t1)}, {v(t2)}, {s(S_T)}")
    g(f"s_mul_i32 {s(S_T)}, {s(S_B)}, {144 * 896}")
    g(f"s_mul_i32 {s(S_T2)}, {s(S_R)}, {80 * 896}")
    g(f"s_add_u32 {s(S_T)}, {s(S_T)}, {s(S_T2)}")
    g(f"s_lshl2_add_u32 {s(S_T2)}, {s(S_H)}, {s(S_W)}")
    g(f"s_lshl_b32 {s(S_T2)}, {s(S_T2)}, 7")
    g(f"s_lshl_b32 m0, {s(S_W)}, 11")
    g("s_waitcnt lgkmcnt(0)")
    srd(g, SRD_X, S_PTR, S_T, 8 * 144 * 896)
    stamp(g, o, "pro")
    g(f"buffer_load_dwordx4 {v(V_DX)}, {s(SRD_X, 4)}, {s(S_XO)} offen {o.xflag} lds")
    g(f"buffer_load_dwordx4 {v(V_DX + 1)}, {s(SRD_X, 4)}, {s(S_XO)} offen offset:1024 {o.xflag} lds")
    g(f"s_mov_b32 m0, {s(S_RING)}")
    srd(g, SRD_WQ, S_PTR + 6, S_T2, 448 * 8192)
    for j in range(4):
        g(f"buffer_load_dwordx4 {v(V_DWQ + j)}, {s(SRD_WQ, 4)}, {s(S_WQO)} offen offset:{1024 * j} {o.wqflag} lds")
    if o.codepf:
        g(f"s_getpc_b64 {s(S_SC, 2)}")
        g(f"s_lshl2_add_u32 {s(S_T)}, {s(S_SH)}, {s(S_W)}")
        g(f"v_lshl_add_u32 v2, v0, 6, {s(S_T)}")
        g(f"v_lshlrev_b32 v2, 7, v2")
        g(f"v_min_u32 v2, L_main_end-{KN}-256, v2")
        g("s_mov_b64 exec, 0x1ff")
        g(f"global_load_dword {v(V_RI)}, v2, {s(S_SC, 2)}")
        g("s_mov_b64 exec, -1")
    g(f"s_lshl_b32 {s(S_T)}, {s(S_W)}, 5")
    g(f"v_xor_b32 {v(V_DX + 2)}, {s(S_T)}, {v(t0)}")
    g(f"s_mul_i32 {s(S_T)}, {s(S_W)}, {4 * 896}")
    g(f"s_add_u32 {s(S_T)}, {s(S_T)}, {64 * 896}")
    g(f"v_add3_u32 {v(V_DX + 2)}, {v(t1)}, {v(V_DX + 2)}, {s(S_T)}")
    g(f"s_lshl_b32 {s(S_XM)}, {s(S_W)}, 11")


def setup2(g, o):
    q, pos, t0, t1, t2, t3 = range(V_TMP, V_TMP + 6)
    g(f"s_xor_b32 {s(S_WQO + 1)}, {s(S_WQO)}, 0x40000")
    for it in range(1, 7):
        g(f"s_add_u32 {s(S_CNT)}, {s(S_CNT)}, 1")
        g(f"s_cmp_eq_u32 {s(S_CNT)}, 7")
        g(f"s_cselect_b32 {s(S_CNT)}, 0, {s(S_CNT)}")
        g(f"s_lshl_b32 {s(S_XO + it)}, {s(S_CNT)}, 7")
        g(f"s_lshl1_add_u32 {s(S_T)}, {s(S_CNT)}, {s(S_R)}")
        g(f"s_lshl_b32 {s(S_WQO + 2 * it)}, {s(S_T)}, 18")
        g(f"s_xor_b32 {s(S_WQO + 2 * it + 1)}, {s(S_WQO + 2 * it)}, 0x40000")
    for i in range(1, 4):
        g(f"s_add_u32 {s(S_RING + i)}, {s(S_RING)}, {4096 * i}")
    g(f"s_lshl_b32 {s(S_KX)}, {s(S_B)}, 13" if o.ph else f"s_mov_b32 {s(S_KX)}, 0")
    g(f"s_and_b32 {s(S_VX)}, {s(S_KX)}, 0xc000")
    g(f"s_and_b32 {s(S_T2)}, {s(S_H)}, {1 if o.ph == 2 else 0}")
    g(f"s_lshl_b32 {s(S_T2)}, {s(S_T2)}, 12")
    g(f"s_and_b32 {s(S_T3)}, {s(S_KX)}, 0x2000")
    g(f"s_or_b32 {s(S_T3)}, {s(S_T3)}, {s(S_T2)}")
    g(f"v_add_u32 {v(V_DWO)}, {v(t1)}, {v(t3)}")
    g(f"v_lshl_add_u32 {v(t3)}, {v(q)}, 9, {v(t3)}")
    for j in range(4):
        g(f"s_xor_b32 {s(S_T)}, {s(S_T3)}, {4096 * j}")
        g(f"s_add_u32 {s(S_T)}, {s(S_T)}, {BIAS - 1024 * j}")
        g(f"v_add_u32 {v(V_DV + j)}, {s(S_T)}, {v(t3)}")
    g(f"v_lshl_add_u32 {v(t0)}, {v(q)}, 9, {v(t0)}")
    g(f"v_lshl_add_u32 {v(t2)}, {v(q)}, 9, {v(t2)}")
    for j in range(4):
        g(f"s_xor_b32 {s(S_T)}, {s(S_T2)}, {4096 * (j & 1)}")
        g(f"s_add_u32 {s(S_T)}, {s(S_T)}, {BIAS + 128 * (j >> 1) - 1024 * j}")
        g(f"v_add_u32 {v(V_DK + j)}, {s(S_T)}, {v(t2 if j & 1 else t0)}")
    g(f"s_lshl4_add_u32 {s(S_T3)}, {s(S_B)}, {s(S_H)}")
    g(f"s_lshl_b32 {s(S_T)}, {s(S_T3)}, 18" if not o.x_hit else f"s_mov_b32 {s(S_T)}, 0")
    g(f"s_lshl_b32 {s(S_T2)}, {s(S_W)}, 7")
    g(f"s_add_u32 {s(S_T2)}, {s(S_T)}, {s(S_T2)}")
    srd(g, SRD_V, S_PTR + 4, S_T2, 1 << 25, BIAS)
    g(f"s_lshl_b32 {s(S_T2)}, {s(S_W)}, 16")
    g(f"s_add_u32 {s(S_T)}, {s(S_T)}, {s(S_T2)}")
    srd(g, SRD_K, S_PTR + 2, S_T, 1 << 25, BIAS)
    g(f"s_lshl3_add_u32 {s(S_T)}, {s(S_H)}, {s(S_W)}")
    g(f"s_mul_i32 {s(S_T)}, {s(S_T)}, {32 * 896}")
    srd(g, SRD_WO, S_PTR + 8, S_T, 4096 * 896)
    g(f"s_mul_i32 {s(S_T)}, {s(S_T3)}, {SLAB}")
    srd(g, SRD_P, S_PTR + 14, S_T, WS)
    g(f"s_lshl_b32 {s(S_XM3)}, {s(S_W)}, 9")
    g(f"s_add_u32 {s(S_XM3)}, {s(S_XM3)}, 8192")


def late_setup(g, NT, obase):
    t0, t1, t2, gg, row = V_TMP, V_TMP + 1, V_TMP + 2, V_TMP + 3, V_TMP + 4
    for j in range(1, 4):
        g(f"v_add_u32 {v(V_DWO + j)}, {(8 * 896 - 1024) * j}, {v(V_DWO)}")
    g(f"v_lshrrev_b32 {v(gg)}, 4, v0")
    g(f"v_and_b32 {v(row)}, 15, v0")
    g(f"v_lshrrev_b32 {v(t0)}, 2, v0")
    g(f"v_and_b32 {v(t1)}, 6, {v(t0)}")
    g(f"v_bfe_u32 {v(t2)}, v0, 1, 1")
    g(f"v_or_b32 {v(t1)}, {v(t1)}, {v(t2)}")
    g(f"v_lshlrev_b32 {v(t1)}, 4, {v(t1)}")
    g(f"v_lshl_add_u32 {v(t1)}, {v(t0)}, 7, {v(t1)}")
    g(f"v_and_b32 {v(t2)}, 1, v0")
    g(f"v_lshl_add_u32 {v(t1)}, {v(t2)}, 3, {v(t1)}")
    for t in range(4):
        g(f"v_xor_b32 {v(t2)}, {32 * t}, {v(t1)}")
        g(f"v_add_u32 {v(V_T + t)}, {s(S_RING)}, {v(t2)}")
    g(f"s_lshl_b32 {s(S_T)}, {s(S_W)}, 5")
    g(f"v_xor_b32 {v(t2)}, {s(S_T)}, {v(t1)}")
    g(f"v_add_u32 {v(V_WO)}, {LDS_RING}, {v(t2)}")
    g(f"v_add_u32 {v(V_WO2)}, {LDS_X}, {v(t2)}")
    g(f"v_lshrrev_b32 {v(t0)}, 1, {v(row)}")
    g(f"v_xor_b32 {v(t0)}, {v(t0)}, {v(gg)}")
    g(f"v_lshlrev_b32 {v(t0)}, 4, {v(t0)}")
    g(f"v_lshl_add_u32 {v(V_NX)}, {v(row)}, 7, {v(t0)}")
    g(f"v_xor_b32 {v(V_NX + 1)}, 64, {v(V_NX)}")
    g(f"v_add_u32 {v(V_NR)}, {s(S_RING)}, {v(V_NX)}")
    g(f"v_add_u32 {v(V_NR + 1)}, {s(S_RING)}, {v(V_NX + 1)}")
    g(f"v_lshlrev_b32 {v(V_F)}, 4, v0")
    g(f"v_add_u32 {v(V_F + 1)}, {HALF}, {v(V_F)}")
    g(f"v_lshrrev_b32 {v(t0)}, 1, {v(gg)}")
    g(f"v_lshl_add_u32 {v(t0)}, {v(t0)}, 4, {v(row)}")
    g(f"v_lshlrev_b32 {v(t0)}, 4, {v(t0)}")
    g(f"v_and_b32 {v(t1)}, 1, {v(gg)}")
    g(f"v_lshl_add_u32 {v(t0)}, {v(t1)}, 3, {v(t0)}")
    g(f"s_mul_i32 {s(S_T)}, {s(S_W)}, {2 * NT * 1024}")
    g(f"v_add_u32 {v(V_QW)}, {s(S_T)}, {v(t0)}")
    g(f"v_add_u32 {v(V_OW)}, {s(S_T)}, {v(V_F + (1 if obase else 0))}")
    g(f"s_mul_i32 {s(S_T)}, {s(S_W)}, {NT * 1024}")
    g(f"v_add_u32 {v(V_PW)}, {s(S_T)}, {v(V_F)}")
    g(f"v_add_u32 {v(V_PW + 1)}, {s(S_T)}, {v(V_F + 1)}")
    g(f"v_lshlrev_b32 {v(t0)}, 4, {v(row)}")
    g(f"v_add_u32 {v(V_LR)}, {LDS_L}, {v(t0)}")
    g(f"s_lshl_b32 {s(S_T)}, {s(S_W)}, 2")
    g(f"v_add_u32 {v(V_LW)}, {s(S_T)}, {v(V_LR)}")
    for i in range(4):
        g(f"v_mov_b32 {v(V_ONE + i)}, 0x3f803f80")
    sc = f32(math.log2(math.e) / 16.0)
    g(f"s_mov_b32 {s(S_SC)}, {sc}")
    g(f"s_mov_b32 {s(S_SC + 1)}, {sc}")
    g(f"s_mov_b32 {s(S_FLAG)}, 0")


TASKS = [[(0, 3), (2, 4), (0, 4), (2, 5), (0, 5), (4, 5), (2, 6), (0, 6), (4, 3), (3, 4), (1, 4), (3, 5), (1, 5), (3, 6), (1, 6), (4, 6)],
         [(2, 0), (0, 0), (2, 1), (0, 1), (4, 1), (2, 2), (0, 2), (2, 3), (3, 0), (1, 0), (3, 1), (1, 1), (3, 2), (1, 2), (3, 3), (1, 3)]]
assert len(set(sum(TASKS, []))) == 32


def place(kind, st):
    if kind < 4: return kind & 1, (kind >> 1) * 8 + st
    return (st >> 1) & 1, 7 + 8 * (st >> 2)
assert all(place(*t)[0] == i >> 3 for T in TASKS for i, t in enumerate(T))


def slot_off(u):
    return (u >> 1) * 16384 + (u & 1) * 4096


def warm_out(g):
    g(f"s_mov_b32 exec_lo, {s(S_XH)}")
    g("s_mov_b32 exec_hi, 0")
    g(f"buffer_load_dword {v(V_TMP + 1)}, {v(V_OA)}, {s(SRD_OUT, 4)}, 0 offen")
    g.pending.pop(("v", V_TMP + 1))
    g("s_mov_b64 exec, -1")


def fuse_setup(g, o, NT):
    r = 0 if NT == 5 else 1
    ends = [int(x) for x in o.fgrp.split(",")]
    ft = sum(min(e for e in ends if e >= x) << (4 * x) for x in range(7))
    K, ST, T, T2 = S_XO, S_XO + 1, S_XO + 2, S_XO + 3
    P = S_XO + 4
    CW = S_XO + 6
    t0, t1 = V_TMP + 4, V_TMP + 5
    U = S_XO + 7
    def table(dst, vals):
        x = sum(val << (4 * i) for i, val in enumerate(vals))
        return [f"s_mov_b32 {s(P)}, {x & 0xffffffff}", f"s_mov_b32 {s(P + 1)}, {x >> 32}",
                f"s_lshr_b64 {s(P, 2)}, {s(P, 2)}, {s(T)}", f"s_and_b32 {s(dst)}, {s(P)}, 15"]
    def slotoff(dst, u):
        return [f"s_lshr_b32 {s(T2)}, {s(u)}, 1", f"s_lshl_b32 {s(T2)}, {s(T2)}, 2", f"s_and_b32 {s(dst)}, {s(u)}, 1",
                f"s_or_b32 {s(dst)}, {s(dst)}, {s(T2)}", f"s_lshl2_add_u32 {s(dst)}, {s(dst)}, {s(S_W)}", f"s_lshl_b32 {s(dst)}, {s(dst)}, 10"]
    L = []
    L += [f"s_mov_b32 {s(SRD_WS)}, {s(S_PTR + 14)}", f"s_mov_b32 {s(SRD_WS + 1)}, {s(S_PTR + 15)}",
          f"s_mov_b32 {s(SRD_WS + 2)}, {WS}", f"s_mov_b32 {s(SRD_WS + 3)}, 0x20000",
          f"s_mov_b32 {s(SRD_OUT)}, {s(S_PTR + 10)}", f"s_mov_b32 {s(SRD_OUT + 1)}, {s(S_PTR + 11)}",
          f"s_mov_b32 {s(SRD_OUT + 2)}, {8 * 144 * 896}", f"s_mov_b32 {s(SRD_OUT + 3)}, 0x20000",
          f"v_readfirstlane_b32 {s(T)}, {v(V_EP)}", f"s_mov_b32 {s(CW)}, {s(S_W)}",
          f"s_and_b32 {s(S_RD2)}, {s(T)}, 16", f"s_lshl_b32 {s(S_RD2)}, {s(S_RD2)}, 9",
          f"s_and_b32 {s(T)}, {s(T)}, 14", f"s_add_u32 {s(T)}, {s(T)}, {s(S_H)}", f"s_and_b32 {s(T)}, {s(T)}, 15",
          f"s_lshr_b32 {s(S_RD)}, {s(T)}, 3", f"s_lshl_b32 {s(T)}, {s(T)}, 2"
          ] + table(K, [k for k, _ in TASKS[r ^ int(o.swap)]]) + table(ST, [x for _, x in TASKS[r ^ int(o.swap)]]) + table(U, [place(*t)[1] for t in TASKS[r ^ int(o.swap)]]) + [
          f"s_lshl3_add_u32 {s(T)}, {s(K)}, {s(ST)}",
          (f"s_cmp_eq_u32 {s(T)}, {4 * 8 + 6}", f"s_cselect_b32 {s(S_XH)}, 0xffff, -1"),
          f"s_lshl_b32 {s(P)}, {s(S_B)}, 14", f"s_mul_i32 {s(T2)}, {s(S_W)}, 896", f"s_add_u32 {s(T2)}, {s(T2)}, {s(P)}",
          f"s_lshl2_add_u32 {s(T2)}, {s(S_H)}, {s(T2)}", f"s_add_u32 {s(S_FW)}, {s(T2)}, {FLAG_OFF + r * 4 * 896}",
          f"s_mul_i32 {s(T2)}, {s(CW)}, 896", f"s_add_u32 {s(T2)}, {s(T2)}, {s(P)}",
          f"s_lshl_b32 {s(P)}, {s(S_RD)}, 13", f"s_add_u32 {s(T2)}, {s(T2)}, {s(P) if o.f2 else 0}",
          f"s_lshl_b32 {s(T)}, {s(ST)}, 2", f"s_lshr_b32 {s(P)}, {ft}, {s(T)}", f"s_and_b32 {s(P)}, {s(P)}, 15",
          f"s_bfe_u32 {s(T)}, {s(K)}, 0x10001", f"s_mul_i32 {s(T)}, {s(T)}, {4 * 7}", f"s_add_u32 {s(T)}, {s(T)}, {s(P)}",
          f"s_lshl_b32 {s(T)}, {s(T)}, 7", f"s_add_u32 {s(T)}, {s(T)}, {s(T2)}", f"s_add_u32 {s(S_FR)}, {s(T)}, {FLAG_OFF}",
          f"s_and_b32 {s(T)}, {s(S_B)}, 1", f"s_lshl_b32 {s(T)}, {s(T)}, 13",
          ] + slotoff(S_WB, S_H) + [f"s_or_b32 {s(S_WB)}, {s(S_WB)}, {s(T)}",
          f"s_lshl_b32 {s(T2)}, {s(S_H)}, 12", f"s_and_b32 {s(T2)}, {s(T2)}, {s(S_RD2)}", f"s_xor_b32 {s(S_WB)}, {s(S_WB)}, {s(T2)}",
          f"s_lshl_b32 {s(S_RD)}, {s(S_RD)}, 13", f"s_xor_b32 {s(T)}, {s(T)}, {s(S_RD)}",
          f"s_xor_b32 {s(S_WB)}, {s(S_WB)}, {s(S_RD) if o.x_ps else 0}",
          ] + slotoff(S_RD, U) + [f"s_or_b32 {s(S_RD)}, {s(S_RD)}, {s(T)}",
          f"s_lshl_b32 {s(T)}, {s(S_B)}, 21", f"s_or_b32 {s(S_RD)}, {s(S_RD)}, {s(T)}", f"s_xor_b32 {s(S_RD2)}, {s(S_RD2)}, {s(S_RD)}",
          f"s_lshl_b32 {s(T)}, {s(K)}, 3", f"s_mov_b32 {s(P)}, {0 | 32 << 8 | 80 << 16 | 112 << 24}", f"s_mov_b32 {s(P + 1)}, 64",
          f"s_lshr_b64 {s(P, 2)}, {s(P, 2)}, {s(T)}", f"s_and_b32 {s(T)}, {s(P)}, 255",
          f"s_mul_i32 {s(T2)}, {s(S_B)}, 144", f"s_add_u32 {s(T)}, {s(T)}, {s(T2)}", f"s_mul_i32 {s(T)}, {s(T)}, 896",
          f"s_lshr_b32 {s(T2)}, {s(K)}, 2", f"s_andn2_b32 {s(T2)}, {s(ST)}, {s(T2)}", f"s_lshl_b32 {s(T2)}, {s(T2)}, 2",
          f"s_add_u32 {s(T2)}, {s(T2)}, {0 if o.full else s(CW)}", f"s_lshl_b32 {s(T2)}, {s(T2)}, 5", f"s_add_u32 {s(T)}, {s(T)}, {s(T2)}",
          f"s_mov_b32 {s(P)}, {16 * 896}",
          (f"s_cmp_eq_u32 {s(K)}, 4", f"s_cselect_b32 {s(T2)}, 128, {s(P)}")] + ([
          f"s_lshr_b32 {s(P)}, {s(S_W)}, 1", f"s_mul_i32 {s(T2)}, {s(T2)}, {s(P)}", f"s_add_u32 {s(T)}, {s(T)}, {s(T2)}",
          f"s_and_b32 {s(T2)}, {s(S_W)}, 1", f"s_mul_i32 {s(T2)}, {s(T2)}, {8 * 896}", f"s_add_u32 {s(T)}, {s(T)}, {s(T2)}",
          f"s_not_b32 {s(S_XH)}, {s(S_XH)}", f"s_mul_i32 {s(S_XH)}, {s(S_XH)}, {s(P)}",
          f"v_lshrrev_b32 {v(t0)}, 3, v0", f"v_and_b32 {v(t1)}, 7, v0", f"v_lshlrev_b32 {v(t1)}, 4, {v(t1)}",
          f"v_mul_u32_u24 {v(V_OA)}, 896, {v(t0)}", f"v_add3_u32 {v(V_OA)}, {v(V_OA)}, {v(t1)}, {s(T)}",
          f"s_mul_i32 {s(T)}, {s(S_W)}, {8 * 144}", f"s_add_u32 {s(T)}, {s(T)}, 32768", f"v_mul_u32_u24 {v(t0)}, 144, {v(t0)}", f"v_add3_u32 {v(V_OA + 1)}, {v(t0)}, {v(t1)}, {s(T)}",
          f"v_and_b32 {v(t0)}, 31, v0", f"v_mul_u32_u24 {v(t0)}, 144, {v(t0)}", f"v_lshrrev_b32 {v(t1)}, 5, v0",
          f"v_lshl_add_u32 {v(t0)}, {v(t1)}, 4, {v(t0)}", f"s_lshl_b32 {s(T)}, {s(S_W)}, 5", f"s_add_u32 {s(T)}, {s(T)}, 32768", f"v_add_u32 {v(V_QW)}, {s(T)}, {v(t0)}"] if o.full else [
          f"v_and_b32 {v(t0)}, 15, v0", f"v_mul_u32_u24 {v(t0)}, 896, {v(t0)}", f"v_lshrrev_b32 {v(t1)}, 5, v0",
          f"v_lshl_add_u32 {v(t0)}, {v(t1)}, 4, {v(t0)}", f"v_bfe_u32 {v(t1)}, v0, 4, 1",
          f"v_mad_u32_u24 {v(t0)}, {v(t1)}, {s(T2)}, {v(t0)}", f"v_add_u32 {v(V_OA)}, {s(T)}, {v(t0)}"]) + [
          f"v_lshlrev_b32 {v(V_L4)}, 2, v0", f"v_lshlrev_b32 {v(V_L8)}, 13, v0"]
    def emit(t):
        for x in ((t,) if isinstance(t, str) else t): g(x)
    fl = [F(lambda t=t: emit(t), 1 if isinstance(t, str) else 2, 0) for t in L]
    if o.warmo == 0 and not o.full: fl.append(F(lambda: warm_out(g), 2, 0))
    if o.warmf:
        def warm():
            lab = f"L_nowarm_{NT}"
            g(f"s_cmp_lg_u32 {s(S_H)}, 0")
            g(f"s_cbranch_scc1 {lab}")
            g(f"s_mov_b64 exec, {3 if o.f2 else 1}")
            for e in ends:
                g.raw(f"    buffer_atomic_or {v(V_PO)}, {v(V_L8)}, {s(SRD_WS, 4)}, {s(S_FW)} offen offset:{128 * e} sc1")
            g("s_mov_b64 exec, -1")
            g.label(lab)
        fl.append(F(warm, 2, 0))
    return fl


class F:
    def __init__(self, fn, cost=1, at=0, ok=None):
        self.fn, self.cost, self.at, self.ok = fn, cost, at, ok

    def ready(self, i):
        return self.at <= i and (self.ok is None or self.ok())


def mfma(d, A, B, first):
    return f"v_mfma_f32_16x16x32_bf16 {d}, {A}, {B}, {'0' if first else d}"


def run_step(g, mf, qm, ql, qb, drain_b=False, b_first=False):
    for i, m in enumerate(mf):
        g(m)
        budget, sal, took = 2, 1, 0
        pend_b = b_first
        while True:
            hit = False
            for q in (ql, qm, qb):
                if q and q[0].ready(i) and q[0].cost <= 0 and (q[0].cost < 0 or sal > 0 or budget > 0):
                    f = q.pop(0)
                    if f.cost == 0:
                        if sal > 0: sal -= 1
                        else: budget -= 1
                    f.fn(); hit = True
                    break
            if hit: continue
            sal = 0
            b_ready = bool(qb) and qb[0].ready(i)
            if pend_b and b_ready and qb[0].cost == 1 and not (ql and ql[0].ready(i) and ql[0].cost == 2 and budget == 2):
                f = qb.pop(0); budget -= f.cost; f.fn(); pend_b = False
                continue
            if qm and qm[0].ready(i) and 0 < qm[0].cost <= budget:
                f = qm.pop(0); budget -= f.cost; f.fn()
                continue
            if ql and ql[0].ready(i) and 0 < ql[0].cost <= budget and (took == 0 or not b_ready or qb[0].cost > budget):
                f = ql.pop(0); budget -= f.cost; took += 1; f.fn()
                continue
            if b_ready and qb[0].cost > 0 and (budget >= qb[0].cost or (qb[0].cost > 2 and budget == 2)):
                f = qb.pop(0); budget -= f.cost; f.fn()
                if f.cost > 2: budget = 2
                continue
            break
    while ql or qm:
        if qm and (qm[0].ok is None or qm[0].ok()): qm.pop(0).fn()
        else:
            assert ql[0].ok is None or ql[0].ok()
            ql.pop(0).fn()
    for f in qb:
        f.at = 0
    if drain_b:
        while qb:
            qb.pop(0).fn()


def spread(fl, lo, hi, ok=None):
    nv = sum(1 for f in fl if f.cost > 0)
    k = 0
    for f in fl:
        p = lo + (k * (hi - lo + 1)) // max(nv, 1)
        if f.cost > 0:
            f.at = p; f.ok = ok; k += 1
        else:
            f.at = max(p - 1, 0)
    return fl


def body(g, o, NT, tag):
    r = 0 if NT == 5 else 1
    NM = 4 * NT
    def pgroup(pi):
        return (1 - (pi >> 1), pi & 1)
    pv = []
    for p in (2, 3, 0, 1):
        half, idx = pgroup(p)
        for w2 in range(4):
            pv.append((half, idx * 4 + w2, 128 * w2 + 32 * p))
    obase = 0
    ktiles = list(range(8))

    KH = [int(c, 16) for c in o.kh] if o.khold else []
    first = o.khold in (1, 2) and (o.khold == 1) == (NT == 4)
    WH = o.whold if NT == 5 or o.wl < 0 else o.wl
    wpos = int(o.wpos.split(",")[r])
    seq = [("wq", 0)] + ([("k", i) for i in KH] if first else []) + [("wq", n) for n in range(1, 14)]
    seq += ([] if first else [("k", i) for i in KH]) + [("k", i) for i in range(16) if i not in KH]
    for i in range(16):
        seq.append(("v", i))
        if i == wpos: seq += [("wo", j) for j in range(WH)]
    seq += [("wo", j) for j in range(WH, 14)]
    blocks = []
    nring = npar = 0
    for ty, i in seq:
        b = dict(ty=ty, i=i, hold=None, coop=(ty == "wo"), prev=None)
        if ty == "k" and i in KH: b["hold"] = KH.index(i)
        if ty == "wo" and i < WH: b["hold"] = i
        if ty == "wo" and WH and i >= WH + 4:
            b["slot"] = ("x", i - WH - 4)
            assert i - WH - 4 < 5
        else:
            b["slot"] = ("r", nring & 3)
            if nring >= 4: b["prev"] = len(blocks) - 4
            nring += 1
        if b["hold"] is None:
            b["par"] = npar & 1; npar += 1
        blocks.append(b)
    NB = len(blocks)
    src = {(b["ty"], b["i"]): n for n, b in enumerate(blocks)}
    xs = {int(e.split(":")[0]): [int(c) for c in e.split(":")[1]] for e in (o.xsl if o.xpf and r else o.xs).split(",")}
    xat = {it: src[("wq", n)] for n, its in xs.items() for it in its}
    btok, rtok = [None] * NB, [None] * NB
    seen, free = set(), set()
    Z = {"dma": 1, "rd": 0}
    stok = [None] * 7

    def barrier():
        g("s_barrier")
        if Z.get("otok") and g.done["lg"] >= Z["otok"].n: Z["ofree"] = True
        for n in range(NB):
            if btok[n] is not None and g.done["vm"] >= btok[n].n: seen.add(n)
            if rtok[n] is not None and g.done["lg"] >= rtok[n].n: free.add(n)

    def x_fillers(it):
        fl = []
        if it:
            fl.append(F(lambda: g(f"s_add_u32 m0, {s(S_XM)}, {it * NT * 2048}"), 0))
            fl.append(F(lambda: g(f"buffer_load_dwordx4 {v(V_DX)}, {s(SRD_X, 4)}, {s(S_XO + it)} offen {o.xflag} lds")))
            fl.append(F(lambda: g(f"buffer_load_dwordx4 {v(V_DX + 1)}, {s(SRD_X, 4)}, {s(S_XO + it)} offen offset:1024 {o.xflag} lds")))
        if NT == 5:
            if it: fl.append(F(lambda: g(f"s_add_u32 m0, {s(S_XM3)}, {it * NT * 2048}"), 0))
            def third():
                g("s_mov_b32 exec_hi, 0")
                g(f"buffer_load_dwordx4 {v(V_DX + 2)}, {s(SRD_X, 4)}, {s(S_XO + it)} offen {o.xflag} lds")
                g("s_mov_b32 exec_hi, -1")
            fl.append(F(third, 2))
        return fl

    def dma_fillers(n, with_x=True):
        b = blocks[n]; ty, i = b["ty"], b["i"]
        fl = []
        def S(txt): fl.append(F(lambda: g(txt), 0))
        def D(txt, j):
            def fn():
                if j == 0 and b["prev"] is not None:
                    p = b["prev"]
                    assert rtok[p] is not None, (n, p)
                    g.wait(rtok[p])
                    assert not blocks[p]["coop"] or p in free, (n, p)
                if j == 0: assert n == 0 or btok[n - 1] is not None, n
                assert b["slot"] < ("x", 3) or Z.get("ofree"), n
                t = g(txt)
                if j == 3: btok[n] = t
            fl.append(F(fn, 1))
        if ty == "wq":
            if with_x:
                for it in xs.get(i, []): fl += x_fillers(it)
            vo, srd_, so, flag, off = V_DWQ, SRD_WQ, s(S_WQO + i), o.wqflag, None
        elif ty == "k":
            off = (i >> 1) * 8192 + (i & 1) * 256
            vo, srd_, flag = V_DK, SRD_K, ("nt" if i >= o.knt else o.kflag)
        elif ty == "v":
            off = pv[i][2] * 512
            vo, srd_, flag = V_DV, SRD_V, o.vflag
        else:
            off = (i & 1) * 128 * 896 + (i >> 1) * 128
            vo, srd_, flag = V_DWO, SRD_WO, o.woflag
        if off is not None:
            S(f"s_mov_b32 {s(S_SO)}, {off}" if ty == "wo" else f"s_xor_b32 {s(S_SO)}, {s(S_KX if ty == 'k' else S_VX)}, {off}")
            so = s(S_SO)
        kind, k = b["slot"]
        S(f"s_mov_b32 m0, {s(S_RING + k)}" if kind == "r" else f"s_add_u32 m0, {s(S_XM)}, {LDS_X + 16384 * k if k < 3 else 16384 * (k - 3)}")
        for j in range(4):
            D(f"buffer_load_dwordx4 {v(vo + j)}, {s(srd_, 4)}, {so} offen offset:{1024 * j} {flag} lds", j)
        return fl

    def issue_upto(n):
        fl = []
        while Z["dma"] <= min(n, NB - 1):
            fl += dma_fillers(Z["dma"])
            Z["dma"] += 1
        return fl

    def areg(n, t, k=4, o2=0):
        b = blocks[n]
        if b["hold"] is None: return v(V_A + 16 * b["par"] + 4 * t + o2, k)
        if b["hold"] < 6: return a(A_HOLD + 16 * b["hold"] + 4 * t + o2, k)
        if b["hold"] == 6: return v(V_H6 + 4 * t + o2, k)
        if b["hold"] == 7: return v(V_PK + 4 * t + o2, k)
        assert b["hold"] == 8
        return v((V_PK + 16, V_PK + 20, V_DWQ, V_DK)[t] + o2, k)

    def a_reads(n, at=0):
        b = blocks[n]; ty = b["ty"]
        kind, k = b["slot"]
        fl = []
        def chk(): assert not b["coop"] or n in seen, n
        fl.append(F(chk, -1, at))
        def R(txt): fl.append(F(lambda: g(txt), 1, at))
        for t in range(4):
            if ty == "k":
                R(f"ds_read_b128 {areg(n, t)}, {v(V_NR + (t & 1))} offset:{k * 4096 + (t >> 1) * 2048}")
            else:
                if ty != "wo": ad, of = v(V_T + t), k * 4096
                elif kind == "r": ad, of = v(V_WO), k * 4096 + t * 16384
                elif k < 3: ad, of = v(V_WO2), k * 16384 + t * 4096
                else: ad, of = v(V_T), (k - 3) * 16384 + t * 4096
                R(f"ds_read_b64_tr_b16 {areg(n, t, 2)}, {ad} offset:{of}")
                R(f"ds_read_b64_tr_b16 {areg(n, t, 2, 2)}, {ad} offset:{of + 2048}")
        def mark(): rtok[n] = g.last("lg")
        fl.append(F(mark, -1, at))
        return fl

    def wait_block(n, bar, at, also=None):
        def w(): g.wait(btok[n], rtok[also] if also is not None else None)
        fl = [F(w, 0, at, lambda: btok[n] is not None)]
        if bar: fl.append(F(barrier, 0, at))
        return fl

    def fetch(upto, at, qm, bar=False, mid=None, lim=999):
        fl = []
        n0 = Z["rd"]
        for n in range(n0, upto + 1):
            b = blocks[n]
            pc = n > n0 and blocks[n - 1]["coop"]
            need = (b["coop"] and n not in seen) or pc or (bar and n == upto)
            fl += wait_block(n, need, at, n - 1 if pc else None)
            if n == upto and mid: fl += mid
            fl += a_reads(n, at)
            if n > n0:
                d = issue_upto(min(n + 3, lim))
                for f in d: f.at = at; f.ok = (lambda qm=qm: not qm)
                fl += d
        Z["rd"] = max(n0, upto + 1)
        return fl

    xbump = [0]
    def b_reads(ty, i, at=0):
        B = V_B + 20 * (i & 1)
        fl = []
        def R(txt): fl.append(F(lambda: g(txt), 1, at))
        if ty == "wq":
            it, e = i >> 1, i & 1
            if it == 4 and e == 0:
                xbump[0] = 32768
                R(f"v_add_u32 {v(V_NX)}, 32768, {v(V_NX)}")
                R(f"v_add_u32 {v(V_NX + 1)}, 32768, {v(V_NX + 1)}")
            def chk(): assert xat[it] in seen, it
            fl.append(F(chk, -1, at))
            for rt in range(NT):
                R(f"ds_read_b128 {v(B + 4 * rt, 4)}, {v(V_NX + (e ^ r))} offset:{(it * NT + rt) * 2048 - xbump[0]}")
        else:
            half, idx, _ = pv[i]
            for rt in range(NT):
                R(f"ds_read_b128 {v(B + 4 * rt, 4)}, {v(V_F + half)} offset:{(idx * NT + rt) * 1024}")
        return fl

    def run(fl):
        for f in fl: f.fn()

    def sp(fl, lo=1, hi=None, ok=None):
        return spread(fl, lo, NM - 1 if hi is None else hi, ok)

    acc = lambda t, rt: V_ACC + 4 * (t * NT + rt)
    tord = lambda rt, ok: range(3, -1, -1) if (o.serp and ok and rt & 1) else range(4)

    if NT == 5:
        g(f"s_lshl_b32 {s(S_T)}, {s(S_W)}, 9")
        g(f"s_add_u32 m0, {s(S_T)}, 8192")
        run(x_fillers(0))
    btok[0] = g.last("vm")
    setup2(g, o)
    if o.xpf and NT == 5:
        t0, t1 = V_RI + 1, V_RI + 2
        g(f"v_mov_b32 {v(t0)}, {s(S_XO + 1)}")
        g("s_mov_b32 exec_lo, 0xffff0000")
        g(f"v_mov_b32 {v(t0)}, {s(S_XO + 2)}")
        g("s_mov_b32 exec_lo, 0")
        g(f"v_mov_b32 {v(t0)}, {s(S_XO + 3)}")
        g("s_mov_b32 exec_lo, -1")
        g(f"v_and_b32 {v(t1)}, 15, v0")
        g(f"v_mul_u32_u24 {v(t1)}, 896, {v(t1)}")
        g(f"s_add_u32 {s(S_T)}, {s(S_W)}, 5")
        g(f"s_mul_i32 {s(S_T)}, {s(S_T)}, {16 * 896}")
        g(f"v_add_u32 {v(t0)}, {v(t0)}, {v(t1)}")
        g("s_mov_b32 exec_hi, 0xffff")
        g(f"buffer_load_dword {v(t1)}, {v(t0)}, {s(SRD_X, 4)}, {s(S_T)} offen")
        g("s_mov_b32 exec_hi, -1")
    g.pending.clear()
    if NT == 4:
        g(f"s_lshl2_add_u32 {s(S_T)}, s2, {s(S_W)}")
        g(f"s_cmp_eq_u32 {s(S_T)}, 32")
        g("s_cbranch_scc1 L_tag0")
        g.label("L_tag0done")
    late_setup(g, NT, obase)
    if first:
        run(issue_upto(2))
    else:
        for it in xs.get(1, []): run(x_fillers(it))
    stamp(g, o, "iss")
    run(fetch(0, 0, [], True, b_reads("wq", 0)))
    stamp(g, o, "first")
    if not first:
        run(dma_fillers(1, False)); Z["dma"] = 2
    run(issue_upto(2))

    qb = []
    nk0 = src[("wq", 13)] + 1
    nks = src[("k", min(i for i in range(16) if i not in KH))]
    lastbar = 0
    for m in range(14):
        n = src[("wq", m)]
        B = V_B + 20 * (m & 1)
        if NT == 4 and m == o.pstep:
            g(f"s_lshl2_add_u32 {s(S_T)}, s2, {s(S_W)}")
            g(f"s_cmp_eq_u32 {s(S_T)}, 32")
        g.wait(g.last("lg"))
        if NT == 4 and m == o.pstep:
            g("s_cbranch_scc1 L_tag")
            g.label("L_tagdone")
        stamp(g, o, f"s{m}")
        mf = [mfma(v(acc(t, rt), 4), areg(n, t), v(B + 4 * rt, 4), m == 0) for rt in range(NT) for t in tord(rt, m < 13)]
        wat = NM - 8 - 3 - (0 if NT == 5 else 1)
        qm = sp(issue_upto(min(n + 4, nks + 1)))
        ql = []
        if m < 13:
            n1 = src[("wq", m + 1)]
            bar = (m & 1 and xat[(m + 1) >> 1] not in seen) or (m == 11 and lastbar < 7)
            if bar:
                lastbar = m
                ql = fetch(n1, 1, qm, True, b_reads("wq", m + 1, 1))
            else:
                ql = b_reads("wq", m + 1, 0) + fetch(n1, wat if n1 == n + 1 else 0, qm)
        else:
            if nks > nk0:
                sp(qm, 1, 4)
                ql = fetch(min(nk0 + 2, nks - 1), 0, qm)
            for rt in range(NT):
                for t in range(4):
                    c = acc(t, rt); pk_ = V_PK + 2 * ((rt * 4 + t) % 8)
                    at = rt * 4 + t + 4
                    for h2 in range(2):
                        qb.append(F(lambda c=c, h2=h2: g(f"v_pk_mul_f32 {v(c + 2 * h2, 2)}, {v(c + 2 * h2, 2)}, {s(S_SC, 2)}"), 1, at))
                    for h2 in range(2):
                        qb.append(F(lambda c=c, h2=h2, pk_=pk_: g(f"v_cvt_pk_bf16_f32 {v(pk_ + h2)}, {v(c + 2 * h2)}, {v(c + 2 * h2 + 1)}"), 1, at))
                    qb.append(F(lambda t=t, rt=rt, pk_=pk_: g(f"ds_write_b64 {v(V_QW)}, {v(pk_, 2)} offset:{((t >> 1) * NT + rt) * 1024 + (t & 1) * 512}"), 1, at))
        run_step(g, mf, qm, ql, qb, drain_b=(m == 13))
    if nks > nk0:
        run(issue_upto(Z["rd"] + 3))
        run(fetch(min(nk0 + 3, nks - 1), 0, []))
    else:
        run(issue_upto(nks + 2))
    g.wait(g.last("lg"))
    barrier()
    stamp(g, o, "q")
    def tag_load():
        g(f"v_mov_b32 {v(V_PO)}, 0")
        g(f"global_load_dword {v(V_EP)}, {v(V_PO)}, {s(S_PTR + 12, 2)} sc1")

    BF = lambda ks, rt: a(4 * (ks * NT + rt), 4)
    sacc = lambda tile, rt: V_ACC + 20 * (tile & 1) + 4 * rt
    lacc = lambda rt: V_ACC + 40 + 4 * rt
    pk = lambda rt: V_ACC + 60 + 4 * rt

    def frag_reads(base):
        return [F(lambda ks=ks, rt=rt: g(f"ds_read_b128 {BF(ks, rt)}, {v(V_F + (1 if base else 0))} offset:{(ks * NT + rt) * 1024}"), 1, 0)
                for hb in range(2) for ks, rt in ([(4 * hb + kk, rt) for rt in range(NT) for kk in range(4)] if o.rt1 and (o.cfix or (hb and o.rtm))
                                                  else [(4 * hb + kk, rt) for kk in range(4) for rt in range(NT)])]

    def wo_warm(i0, nb):
        if o.warmh and r: return
        lg = 2 if o.warmh else 1
        t0, t1 = V_TMP + 2, V_TMP + 3
        g(f"v_add_u32 {v(t0)}, {i0 << lg}, v0")
        g(f"v_bfe_u32 {v(t1)}, {v(t0)}, {lg}, 1")
        g(f"v_lshlrev_b32 {v(t1)}, 7, {v(t1)}")
        g(f"v_and_or_b32 {v(t1)}, {v(t0)}, {(1 << lg) - 1}, {v(t1)}")
        g(f"v_mul_u32_u24 {v(t1)}, 896, {v(t1)}")
        g(f"v_lshrrev_b32 {v(t0)}, {lg + 1}, {v(t0)}")
        g(f"v_lshl_add_u32 {v(t0)}, {v(t0)}, 7, {v(t1)}")
        g(f"s_mul_i32 {s(S_T)}, {s(S_SH)}, {2 * 896}")
        nl = nb << lg
        if nl <= 31: g(f"s_mov_b64 exec, {hex((1 << nl) - 1)}")
        else: g(f"s_mov_b32 exec_hi, {hex((1 << (nl - 32)) - 1)}")
        g(f"buffer_load_dword {v(V_TMP + 1)}, {v(t0)}, {s(SRD_WO, 4)}, {s(S_T)} offen")
        g("s_mov_b64 exec, -1")
        g.pending.pop(("v", V_TMP + 1))
    def code_warm(step):
        t0 = V_TMP + 2
        g(f"s_getpc_b64 {s(S_PF, 2)}")
        g.label(f"L_pc{step}_{tag}")
        g(f"s_lshr_b32 {s(S_T)}, s2, 4")
        g(f"s_lshl2_add_u32 {s(S_T)}, {s(S_T)}, {s(S_W)}")
        g(f"s_lshr_b32 {s(S_T)}, {s(S_T)}, 1")
        g(f"v_lshl_add_u32 {v(t0)}, v0, 5, {s(S_T)}")
        g(f"v_lshlrev_b32 {v(t0)}, 7, {v(t0)}")
        g(f"v_min_u32 {v(t0)}, L_end_{tag}-L_pc{step}_{tag}, {v(t0)}")
        g("s_mov_b64 exec, 15")
        g(f"global_load_dword {v(V_TMP + 1)}, {v(t0)}, {s(S_PF, 2)}")
        g("s_mov_b64 exec, -1")
        g.pending.pop(("v", V_TMP + 1))
    cpf_at = [int(x) for x in o.cpf.split(",")]
    def warm_f(step):
        k = warm_at.index(step)
        i0, nb = (0, 14) if len(warm_at) == 1 else ((0, o.whold), (0, 14) if o.rewarm else (o.whold, 14 - o.whold))[k]
        return F(lambda: wo_warm(i0, nb), 2)
    warm_at = [int(x) for x in o.wopf.split(",")]

    def softmax_fillers(tile, at):
        fl = []
        odd = tile & 1
        pi = tile >> 1
        half, idx = pgroup(pi)
        late = []
        for rt in range(NT):
            c = sacc(tile, rt)
            off = (idx * 4 * NT + rt) * 1024
            for i in range(4):
                fl.append(F(lambda c=c, i=i: g(f"v_exp_f32 {v(c + i)}, {v(c + i)}"), 2, at(rt)))
                if i == 1: fl += late; late = []
            for h2 in range(2):
                fl.append(F(lambda c=c, h2=h2, rt=rt: g(f"v_cvt_pk_bf16_f32 {v(pk(rt) + 2 * odd + h2)}, {v(c + 2 * h2)}, {v(c + 2 * h2 + 1)}"), 1, at(rt)))
            if odd:
                late.append(F(lambda rt=rt: g(mfma(v(lacc(rt), 4), v(V_ONE, 4), v(pk(rt), 4), pi == 0)), 3, 0))
            if o.pw == "b64":
                late.append(F(lambda rt=rt, off=off: g(f"ds_write_b64 {v(V_PW + half)}, {v(pk(rt) + 2 * odd, 2)} offset:{off + 8 * odd}"), 2, 0))
            elif odd:
                late.append(F(lambda rt=rt, off=off: g(f"ds_write_b128 {v(V_PW + half)}, {v(pk(rt), 4)} offset:{off}"), 2, 0))
        return fl + late

    def tile_steps(ty, nsteps, sbase, fr, epi, plan, mid=None):
        qb = []
        done = 0
        for m in range(nsteps):
            n = src[(ty, m)]
            tile, hb = m >> 1, m & 1
            g.wait(rtok[n])
            stamp(g, o, f"s{sbase + m}")
            rtm = o.rtm and hb == 1 and (m > 1 or o.rt1)
            cf = rtm or (o.cfix and (m > 1 or o.rt1))
            order = [(kk, rt) for rt in range(NT) for kk in range(4)] if cf else [(kk, rt) for kk in range(4) for rt in range(NT)]
            mf = [mfma(v(sacc(tile, rt), 4), areg(n, kk), BF(4 * hb + kk, rt), hb == 0 and kk == 0) for kk, rt in order]
            qm, ql = plan(m, n)
            if m < 2:
                k = NM if m == 0 else len(fr)
                qb = fr[:k]; del fr[:k]
                if rtm:
                    qb += epi(0, lambda rt: 4 * rt + 7); done = 1
                run_step(g, mf, qm, ql, qb, drain_b=not rtm, b_first=True)
            else:
                if hb == 0 and done < tile:
                    qb += epi(tile - 1, lambda rt: 2); done = tile
                nold = len(qb)
                if rtm:
                    qb += epi(tile, lambda rt: 4 * rt + 7); done = tile + 1
                nnew = len(qb) - nold
                run_step(g, mf, qm, ql, qb)
                while hb == 1 and len(qb) > nnew: qb.pop(0).fn()
        if done < nsteps // 2: qb += epi(nsteps // 2 - 1, lambda rt: 0)
        if mid: mid(qb)
        run(qb)

    def plan_k(m, n):
        n1 = src[("k", m + 1)] if m < 15 else src[("v", 0)]
        wat = NM - (o.kwat if m < 15 else max(11, o.kwat))
        qm = issue_upto(Z["rd"] - 1 + (4 if KH and m <= max(KH) else o.kd))
        if m == 8: qm.insert(0, F(tag_load, 2))
        if 14 + m in warm_at: qm.insert(0, warm_f(14 + m))
        if 14 + m in cpf_at: qm.insert(0, F(lambda: code_warm(14 + m), 2))
        sp(qm, 1, min(o.khi, NM - 1))
        ql = [F(barrier, 0, 0)] if m == 7 else []
        if m == 0 and nks > nk0: ql += fetch(nks - 1, 2, qm)
        if n1 >= Z["rd"]: ql += fetch(n1, wat, qm)
        return qm, ql

    LOOK = 10
    fr = frag_reads(0)
    run(fr[:LOOK]); del fr[:LOOK]
    if not KH: run(fetch(nks, 0, []))
    def t2_loads(qb):
        v0 = src[("v", 0)]
        if o.t2x >= 2 and blocks[v0 + 1]["ty"] == "v":
            qb[4:4] = fetch(v0 + 1, 0, [])
        if o.t2x >= 1:
            d = issue_upto(v0 + 4)
            n0 = len(qb)
            for j, f in enumerate(d):
                qb.insert(min(len(qb), max(0, (j - len(d) + 5)) * n0 // 5 + j), f)
    tile_steps("k", 16, 14, fr, softmax_fillers, plan_k, t2_loads)

    def write_l():
        for rt in range(NT):
            g(f"ds_write_b32 {v(V_LW)}, {v(lacc(rt))} offset:{rt * 256}")
    write_l()
    run(issue_upto(Z["rd"] + 2))
    g(f"v_cmp_eq_u32 vcc, 0, {v(V_EP)}")
    g.wait(g.last("lg"))
    barrier()
    g(f"s_cbranch_vccnz L_ep_{tag}")
    g.label(f"L_epok_{tag}")
    if o.t2x: run(issue_upto(Z["rd"] + 3))
    stamp(g, o, "p")

    g.label(f"L_pv_{tag}")
    for rt in range(NT):
        g(f"ds_read_b128 {v(V_PK + 4 * rt, 4)}, {v(V_LR)} offset:{rt * 256}")
    run(b_reads("v", 0))
    for rt in range(NT):
        p = V_PK + 4 * rt
        g(f"v_add_f32 {v(p)}, {v(p)}, {v(p + 1)}")
        g(f"v_add_f32 {v(p + 2)}, {v(p + 2)}, {v(p + 3)}")
        g(f"v_add_f32 {v(V_LS + rt)}, {v(p)}, {v(p + 2)}")
        g(f"v_rcp_f32 {v(V_RI + rt)}, {v(V_LS + rt)}")
    g(f"v_max_f32 {v(V_TMP)}, {v(V_LS)}, {v(V_RI)}")
    for rt in range(1, NT):
        g(f"v_max3_f32 {v(V_TMP)}, {v(V_TMP)}, {v(V_LS + rt)}, {v(V_RI + rt)}")
    g(f"v_cmp_lt_f32 vcc, {f32(2.0 ** 60)}, {v(V_TMP)}")
    g.nop(2)
    g(f"s_cbranch_vccz L_pvgo_{tag}")
    g(f"s_cmp_eq_u32 {s(S_FLAG)}, 0")
    g(f"s_cbranch_scc1 L_slow_{tag}")
    g.label(f"L_pvgo_{tag}")
    qb = []
    nv = src[("v", 15)]
    assert not WH or wpos <= 14
    wplan = [int(x) for x in o.wplan.split(",")]
    if 0 < WH < 7: wplan = wplan[:7] + [7] * (WH - 5) + [8, 9]
    for m in range(16):
        n = src[("v", m)]
        B = V_B + 20 * (m & 1)
        g.wait(g.last("lg"))
        stamp(g, o, f"s{30 + m}")
        mf = [mfma(v(acc(t, rt), 4), areg(n, t), v(B + 4 * rt, 4), m == 0) for rt in range(NT) for t in tord(rt, m < 15)]
        wat = NM - 8 - 3 - (0 if NT == 5 else 1)
        if m >= 15 - o.latew: wat = NM - 1
        ql = []
        if m == 12: ql.append(F(barrier, 0, 0))
        if m == 1:
            qb += fuse_setup(g, o, NT)
        lim = {14: nv + wplan[0], 15: nv + wplan[1]}.get(m, nv)
        qm = issue_upto(min(n + 4, lim))
        if 30 + m == o.warmo: qm.append(F(lambda: warm_out(g), 2))
        if 30 + m in warm_at: qm.insert(0, warm_f(30 + m))
        if 30 + m in cpf_at: qm.insert(0, F(lambda m=m: code_warm(30 + m), 2))
        sp(qm)
        if m < 15:
            n1 = src[("v", m + 1)]
            if n1 > n + 1: sp(qm, 1, 4); wat = 3
            ql += b_reads("v", m + 1, 0) + fetch(n1, wat, qm, lim=lim)
        else:
            for rt in range(NT):
                for p in range(2):
                    pkr = acc(2 * p, rt)
                    at = rt * 4 + 2 * p + 4
                    for t in (2 * p, 2 * p + 1):
                        c = acc(t, rt)
                        for h2 in range(2):
                            qb.append(F(lambda c=c, h2=h2, t=t, pkr=pkr: g(f"v_cvt_pk_bf16_f32 {v(pkr + 2 * (t & 1) + h2)}, {v(c + 2 * h2)}, {v(c + 2 * h2 + 1)}"), 1, at))
                    qb.append(F(lambda p=p, rt=rt, pkr=pkr: g(f"ds_write_b128 {v(V_OW)}, {v(pkr, 4)} offset:{(p * NT + rt) * 1024}"), 1, at))
        run_step(g, mf, qm, ql, qb, drain_b=(m == 15))
    run(issue_upto(nv + wplan[2]))
    g(f"s_lshl_b32 {s(S_XM)}, {s(S_W)}, 12")
    if 0 < WH < 7: g(f"v_subrev_u32 {v(V_T)}, {LDS_X}, {v(V_WO2)}")
    g.wait(None if WH else btok[nv + 1], g.last("lg"))
    barrier()
    stamp(g, o, "o")

    ends = [int(x) for x in o.fgrp.split(",")]
    held = []
    sbs = [int(c) for c in o.sb] if not WH else []
    def out_fillers(st, at):
        fl = []
        assert not sbs or NT == 4
        base = V_B + 8 * (st % (5 if sbs else 3))
        b4 = V_B + 24 + 4 * ((st >> 1) & 1)
        dst = held if sbs and st <= max(sbs) else fl
        for rt in range(NT):
            c = sacc(st, rt)
            for i in range(4):
                fl.append(F(lambda c=c, i=i, rt=rt: g(f"v_mul_f32 {v(c + i)}, {v(c + i)}, {v(V_RI + rt)}"), 1, at(rt)))
            for h2 in range(2):
                fl.append(F(lambda c=c, h2=h2, rt=rt: g(f"v_cvt_pk_bf16_f32 {v((base + 2 * rt if rt < 4 else b4 + 2 * (st & 1)) + h2)}, {v(c + 2 * h2)}, {v(c + 2 * h2 + 1)}"), 1, at(rt)))
            if rt in (1, 3):
                pidx = 2 * r + (rt >> 1)
                def stx4(rt=rt, pidx=pidx):
                    g(f"s_xor_b32 {s(S_ST)}, {s(S_WB)}, {place(pidx, st)[0] * (8192 if not o.x_ps else 1 << 25) + (o.x_ps >> 1) * 8192 + slot_off(place(pidx, st)[1])}")
                    stok[st] = g(f"buffer_store_dwordx4 {v(base + 2 * (rt - 1), 4)}, {v(V_F)}, {s(SRD_P, 4)}, {s(S_ST)} offen {o.stflag}")
                dst.append(F(stx4, 1 if dst is fl else 2, 0))
            if rt == 4 and (st & 1 or st == 6):
                def stx4b():
                    g(f"s_xor_b32 {s(S_ST)}, {s(S_WB)}, {place(4, st)[0] * (8192 if not o.x_ps else 1 << 25) + (o.x_ps >> 1) * 8192 + slot_off(place(4, st)[1])}")
                    stok[st] = g(f"buffer_store_dwordx4 {v(b4, 4)}, {v(V_F)}, {s(SRD_P, 4)}, {s(S_ST)} offen {o.stflag}")
                dst.append(F(stx4b, 1 if dst is fl else 2, 0))
        if st in sbs:
            fl += held; held.clear()
        for e in ends:
            e2 = min([x for x in sbs if x >= e] + [e if not sbs or e > max(sbs) else 9])
            if e < 6 and min(e2 + o.flagd, 6) == st: fl.append(F(lambda e=e: flag(e), 2, 2))
        return fl

    def flag(st):
        g.wait(stok[st])
        g(f"s_mov_b64 exec, {3 if o.f2 else 1}")
        g(f"buffer_atomic_swap {v(V_EP)}, {v(V_L8)}, {s(SRD_WS, 4)}, {s(S_FW)} offen offset:{128 * st} sc1")
        g("s_mov_b64 exec, -1")

    def poll_issue(dst, mask):
        g(f"s_mov_b32 exec_lo, {mask}")
        g("s_mov_b32 exec_hi, 0")
        g(f"v_mov_b32 {v(dst)}, 0")
        t = g(f"buffer_atomic_or {v(dst)}, {v(V_L4)}, {s(SRD_WS, 4)}, {s(S_FR)} offen sc0 sc1")
        return t
    def early_poll():
        Z["ptok"] = poll_issue(V_TMP, "0xffff")
        g("s_mov_b64 exec, -1")

    def plan_o(m, n):
        qm, ql = plan_o2(m, n)
        if 46 + m == o.warmo: qm.append(F(lambda: warm_out(g), 2, 1))
        if m == o.early and o.earlyr >> r & 1: qm.append(F(early_poll, 2, NM // 2))
        return qm, ql

    def plan_o2(m, n):
        if m == 13: return [], []
        n1 = src[("wo", m + 1)]
        if WH:
            if m == 2: Z["otok"] = g.last("lg")
            upto = nv + wplan[min(3 + m, len(wplan) - 1)]
            qm = sp(issue_upto(upto), 2, None, (lambda: Z.get("ofree")) if min(upto, NB - 1) > nv + 7 else None)
            ql = []
            wf = min(o.wfirst, WH)
            if m == WH - 1: ql = [F(lambda: g.wait(btok[min(nv + wf, NB - 1)], Z["otok"]), 0, 1)]
            if m == WH - 1 + wf: ql = [F(lambda: g.wait(btok[NB - 1]), 0, 1)]
            if m >= WH - 1: ql += fetch(n1, 1, qm)
            return qm, ql
        if o.x_w >> r & 1 and m >= 3:
            seen.add(n1); return [], a_reads(n1, 1)
        ql = fetch(n1, 1, [], True)
        if o.skew:
            def half(k):
                g(f"s_cbranch_vcc{'nz' if k else 'z'} L_sk{m}_{k}_{tag}")
                if k: barrier()
                else: g("s_barrier")
                g.label(f"L_sk{m}_{k}_{tag}")
            ql[0].at = 0
            ql[1:2] = [F(lambda: half(0), 2, 0), F(lambda: half(1), 2, o.skew)]
        qm = sp(issue_upto(n + 4), 2 + o.skew, None, lambda: n in free)
        return qm, ql

    if not WH and o.skew:
        g(f"s_bitcmp1_b32 {s(S_W)}, {o.skb}")
        g("s_cselect_b64 vcc, -1, 0")
    if not WH: run(fetch(nv + 1, 0, []))
    fr = frag_reads(obase)
    run(fr[:LOOK]); del fr[:LOOK]
    if not WH: run(issue_upto(nv + 4))
    tile_steps("wo", 14, 46, fr, out_fillers, plan_o)
    stamp(g, o, "out")

    D = 64
    hx = lambda h: h * SLAB + slot_off(h)
    def reads():
        g(f"s_mov_b32 exec_hi, -1")
        for h in range(16):
            g(f"s_xor_b32 {s(S_ST)}, {s(S_RD2 if h & 2 else S_RD)}, {hx(h)}")
            g(f"buffer_load_dwordx4 {v(D + 4 * h, 4)}, {v(V_F)}, {s(SRD_WS, 4)}, {s(S_ST)} offen {o.rdflag}")
    if o.early < 14 and o.earlyr >> r & 1:
        g.wait(Z["ptok"])
        g(f"v_cmp_eq_u32 vcc, {v(V_TMP)}, {v(V_EP)}")
        g.nop(1)
        g(f"s_and_b32 {s(S_T)}, vcc_lo, 0xffff")
        g(f"s_cmp_lg_u32 {s(S_T)}, 0xffff")
        g(f"s_cbranch_scc1 L_late_{tag}")
        snap = g.snapshot()
        stamp(g, o, "poll")
        reads()
        flag(6)
        stamp(g, o, "flag")
        g(f"s_branch L_sum_{tag}")
        g.label(f"L_late_{tag}")
        g.restore(snap)
    flag(6)
    stamp(g, o, "flag")
    g(f"s_mov_b32 {s(S_CNT)}, 0x100000")
    g(f"s_mov_b32 {s(S_T3)}, 0xffff")
    if o.exp == 1: g(f"s_branch L_exp1_{tag}")
    g.label(f"L_poll_{tag}")
    poll_issue(V_TMP, s(S_T3))
    g(f"s_sub_u32 {s(S_CNT)}, {s(S_CNT)}, 1")
    g(f"s_cbranch_scc1 L_k1_end")
    g.wait_all(lg=False, force=True)
    g(f"v_cmp_eq_u32 vcc, {v(V_TMP)}, {v(V_EP)}")
    g("s_mov_b32 exec_lo, -1")
    if o.dyn >> r & 1:
        g(f"s_mov_b32 exec_hi, -1")
        g(f"s_and_b32 {s(S_T)}, vcc_lo, {s(S_T3)}")
        g(f"s_cbranch_scc0 L_poll_{tag}")
        g(f"s_xor_b32 {s(S_T3)}, {s(S_T3)}, {s(S_T)}")
        for h in range(16):
            if h % 4 == 0:
                g(f"s_and_b32 {s(S_T2)}, {s(S_T)}, {15 << h}")
                g(f"s_cbranch_scc0 L_skip{h + 3}_{tag}")
            g(f"s_bitcmp1_b32 {s(S_T)}, {h}")
            g(f"s_cbranch_scc0 L_skip{h}_{tag}")
            g(f"s_xor_b32 {s(S_ST)}, {s(S_RD2 if h & 2 else S_RD)}, {hx(h)}")
            g(f"buffer_load_dwordx4 {v(D + 4 * h, 4)}, {v(V_F)}, {s(SRD_WS, 4)}, {s(S_ST)} offen {o.rdflag}")
            g.label(f"L_skip{h}_{tag}")
        g(f"s_cmp_lg_u32 {s(S_T3)}, 0")
        g(f"s_cbranch_scc1 L_poll_{tag}")
        stamp(g, o, "poll")
        g(f"s_waitcnt vmcnt(0)")
    else:
        g.nop(1)
        g(f"s_andn2_b32 {s(S_T3)}, {s(S_T3)}, vcc_lo")
        g(f"s_cbranch_scc1 L_poll_{tag}")
        stamp(g, o, "poll")
        reads()
    g.label(f"L_sum_{tag}")
    g(f"s_mov_b32 {s(S_T)}, {'0x00003f80' if o.dot else '0xffff0000'}")
    if o.dot: g(f"s_mov_b32 {s(S_T2)}, 0x3f800000")
    C = V_A
    for h in range(16):
        for i in range(4):
            src = D + 4 * h + i
            if h == 0:
                g(f"v_lshlrev_b32 {v(C + 2 * i)}, 16, {v(src)}")
                g(f"v_and_b32 {v(C + 1 + 2 * i)}, 0xffff0000, {v(src)}")
            elif o.dot:
                g(f"v_dot2c_f32_bf16 {v(C + 2 * i)}, {s(S_T)}, {v(src)}")
                g(f"v_dot2c_f32_bf16 {v(C + 2 * i + 1)}, {s(S_T2)}, {v(src)}")
            else:
                tt = C + 8 + 2 * (i & 1)
                g(f"v_lshlrev_b32 {v(tt)}, 16, {v(src)}")
                g(f"v_and_b32 {v(tt + 1)}, {s(S_T)}, {v(src)}")
                g(f"v_pk_add_f32 {v(C + 2 * i, 2)}, {v(C + 2 * i, 2)}, {v(tt, 2)}")
    if o.dot: g.nop(3)
    for i in range(4):
        g(f"v_cvt_pk_bf16_f32 {v(C + 12 + i)}, {v(C + 2 * i)}, {v(C + 1 + 2 * i)}")
    for i in range(2):
        g(f"v_permlane16_swap_b32 {v(C + 12 + i)}, {v(C + 14 + i)}")
    if o.full:
        g(f"ds_write_b128 {v(V_QW)}, {v(C + 12, 4)}")
        g(f"s_cmp_lg_u32 {s(S_XH)}, 0")
        g.wait(g.last("lg"))
        g("s_barrier")
        g(f"s_cbranch_scc1 L_exp1_{tag}")
        g(f"ds_read_b128 {v(C + 12, 4)}, {v(V_OA + 1)}")
    else:
        g(f"s_mov_b32 exec_lo, {s(S_XH)}")
        g(f"s_mov_b32 exec_hi, {s(S_XH)}")
    g(f"buffer_store_dwordx4 {v(C + 12, 4)}, {v(V_OA)}, {s(SRD_OUT, 4)}, 0 offen {o.outflag}")
    g.label(f"L_exp1_{tag}")
    stamp(g, o, "sum")
    if o.stamps:
        g.wait_all(force=True)
        stamp(g, o, "drain")
        g("s_waitcnt lgkmcnt(0)")
        g(f"s_lshl2_add_u32 {s(S_T)}, s2, {s(S_W)}")
        g(f"s_lshl_b32 {s(S_T)}, {s(S_T)}, 7")
        g(f"s_add_u32 {s(S_T)}, {s(S_T)}, {STAMP_OFF}")
        g(f"v_mov_b32 v1, 0")
        for i in range(len(o.slist.split(','))):
            g(f"v_mov_b32 v2, {s(S_STAMP + 2 * i)}")
            g(f"v_mov_b32 v3, {s(S_STAMP + 2 * i + 1)}")
            g(f"buffer_store_dwordx2 v[2:3], v1, {s(SRD_WS, 4)}, {s(S_T)} offen offset:{8 * i}")
            g.nop(2)
    g.label(f"L_end_{tag}")
    g("s_endpgm")

    if NT == 4:
        PO = lambda k, c: 65536 + 20480 * k + 8192 * (c ^ (EP_OFF >> 21 & 1))
        g.label("L_tag0")
        g.reset_state()
        g(f"s_add_u32 {s(S_PF)}, {s(S_PTR + 14)}, {EP_OFF}")
        g(f"s_addc_u32 {s(S_PF + 1)}, {s(S_PTR + 15)}, 0")
        g(f"s_load_dword {s(S_FW)}, {s(S_PF, 2)}, 0")
        if o.pol == 3:
            t0, t1 = V_RI + 2, V_RI + 1
            g(f"v_bfe_u32 {v(t0)}, v0, 4, 1")
            g(f"v_lshlrev_b32 {v(t0)}, 13, {v(t0)}")
            g(f"v_lshrrev_b32 {v(t1)}, 5, v0")
            g(f"v_mul_u32_u24 {v(t1)}, 20480, {v(t1)}")
            g(f"v_add_u32 {v(t1)}, {v(t1)}, {v(t0)}")
            g(f"v_and_b32 {v(t0)}, 15, v0")
            g(f"v_lshl_add_u32 {v(t1)}, {v(t0)}, 3, {v(t1)}")
            g(f"v_add_u32 {v(t1)}, 65536, {v(t1)}")
            g(f"v_mov_b32 {v(t0)}, 0")
            g(f"v_mov_b32 {v(t0 + 1)}, 0")
            g.raw(f"    global_store_dwordx2 {v(t1)}, {v(t0, 2)}, {s(S_PF, 2)} sc1")
        g("s_waitcnt lgkmcnt(0)")
        g("s_branch L_tag0done")
        g.raw(".p2align 6")
        g.label("L_tag")
        g(f"s_getreg_b32 {s(S_T2)}, hwreg(HW_REG_XCC_ID, 0, 3)")
        if o.pol == 3:
            RA, RB, CN = S_FR, S_RD, S_XH
            g(f"s_mov_b32 {s(S_CNT)}, 0x1000")
            for k in range(2):
                g(f"s_mov_b32 {s(RA)}, 1")
                g(f"s_mov_b32 {s(RB)}, 1")
                g(f"s_mov_b32 {s(CN)}, 0x800")
                g(f"s_load_dword {s(RA)}, {s(S_PF, 2)}, {PO(k, k)}")
                g(f"s_load_dword {s(RB)}, {s(S_PF, 2)}, {PO(k, 1 - k)}")
                g.label(f"L_raceA{k}")
                g(f"s_sub_u32 {s(CN)}, {s(CN)}, 1")
                g(f"s_min_u32 {s(S_T3)}, {s(CN)}, {s(RA)}")
                g(f"s_cmp_lg_u32 {s(S_T3)}, 0")
                g(f"s_cbranch_scc1 L_raceA{k}")
                g(f"s_mov_b32 {s(CN)}, 0x800")
                g.label(f"L_raceB{k}")
                g(f"s_sub_u32 {s(CN)}, {s(CN)}, 1")
                g(f"s_min_u32 {s(S_T3)}, {s(CN)}, {s(RB)}")
                g(f"s_cmp_lg_u32 {s(S_T3)}, 0")
                g(f"s_cbranch_scc1 L_raceB{k}")
                g("s_waitcnt lgkmcnt(0)")
                g(f"{'s_add_u32' if k else 's_sub_u32'} {s(S_CNT)}, {s(S_CNT)}, {s(CN)}")
            g(f"s_and_b32 {s(S_T2)}, {s(S_T2)}, 3")
            g(f"s_cmp_le_u32 {s(S_CNT)}, {0x1000 - o.pmarg}")
            g(f"s_cselect_b32 {s(S_T3)}, 4, 8")
            g(f"s_cmp_ge_u32 {s(S_CNT)}, {0x1000 + o.pmarg}")
            g(f"s_cselect_b32 {s(S_T3)}, 0, {s(S_T3)}")
            g(f"s_add_u32 {s(S_T2)}, {s(S_T2)}, {s(S_T3)}")
        elif o.pol:
            g(f"s_xor_b32 {s(S_T2)}, {s(S_T2)}, {4 * o.pol}")
        g(f"s_or_b32 {s(S_T)}, {s(S_FW)}, 31")
        g(f"s_add_u32 {s(S_T)}, {s(S_T)}, 2")
        g(f"s_lshl1_add_u32 {s(S_T)}, {s(S_T2)}, {s(S_T)}")
        g(f"v_mov_b32 {v(V_EP)}, {s(S_T)}")
        g(f"v_mov_b32 {v(V_PO)}, 0")
        g("s_mov_b64 exec, 1")
        g.raw(f"    global_store_dword {v(V_PO)}, {v(V_EP)}, {s(S_PTR + 12, 2)} sc1")
        g.raw(f"    global_store_dword {v(V_PO)}, {v(V_EP)}, {s(S_PF, 2)} sc1")
        if o.stamps:
            g(f"v_mov_b32 {v(V_RI)}, {s(S_CNT)}")
            g.raw(f"    global_store_dword {v(V_PO)}, {v(V_RI)}, {s(S_PTR + 12, 2)} offset:4 sc1")
        g("s_mov_b64 exec, -1")
        g("s_branch L_tagdone")
    yield

    g.label(f"L_ep_{tag}")
    g.reset_state()
    g(f"s_mov_b32 {s(S_CNT)}, 0x100000")
    g(f"v_mov_b32 {v(V_TMP)}, 0")
    g.label(f"L_ep2_{tag}")
    g(f"global_load_dword {v(V_EP)}, {v(V_TMP)}, {s(S_PTR + 12, 2)} sc1")
    g.wait_all(lg=False, force=True)
    g(f"s_sub_u32 {s(S_CNT)}, {s(S_CNT)}, 1")
    g(f"s_cbranch_scc1 L_epok_{tag}")
    g(f"v_cmp_eq_u32 vcc, 0, {v(V_EP)}")
    g.nop(2)
    g(f"s_cbranch_vccnz L_ep2_{tag}")
    g(f"s_branch L_epok_{tag}")

    g.label(f"L_slow_{tag}")
    g.reset_state()
    KF = 208
    VK = V_TMP + 1
    VM = V_LS
    VP = V_TMP + 2
    g.wait_all(force=True)
    g.nop(8)
    g("s_barrier")
    g(f"s_mov_b32 {s(S_FLAG)}, 1")
    g(f"v_and_b32 {v(VK)}, 15, v0")
    g(f"v_lshlrev_b32 {v(VK)}, 9, {v(VK)}")
    g(f"v_lshrrev_b32 {v(V_TMP)}, 4, v0")
    g(f"v_lshl_add_u32 {v(VK)}, {v(V_TMP)}, 4, {v(VK)}")
    g(f"s_and_b32 {s(S_T)}, {s(S_H)}, {1 if o.ph == 2 else 0}")
    g(f"s_lshl_b32 {s(S_T)}, {s(S_T)}, 12")
    g(f"v_xor_b32 {v(VK)}, {s(S_T)}, {v(VK)}")
    g(f"v_add_u32 {v(VK)}, {BIAS}, {v(VK)}")
    for rt in range(NT):
        g(f"v_mov_b32 {v(VM + rt)}, 0xff800000")

    def slow_tile(par):
        for ks in range(8):
            g(f"buffer_load_dwordx4 {v(KF + 4 * ks, 4)}, {v(VK)}, {s(SRD_K, 4)}, {s(S_SO)} offen offset:{64 * ks}")
        for ks in range(8):
            for rt in range(NT):
                g(mfma(v(sacc(par, rt), 4), v(KF + 4 * ks, 4), BF(ks, rt), ks == 0))
    g(f"s_mov_b32 {s(S_SO)}, 0")
    g.label(f"L_slow1_{tag}")
    slow_tile(0)
    for rt in range(NT):
        c = sacc(0, rt)
        g(f"v_max3_f32 {v(VM + rt)}, {v(VM + rt)}, {v(c)}, {v(c + 1)}")
        g(f"v_max3_f32 {v(VM + rt)}, {v(VM + rt)}, {v(c + 2)}, {v(c + 3)}")
    g(f"s_add_u32 {s(S_SO)}, {s(S_SO)}, 8192")
    g(f"s_cmp_lt_u32 {s(S_SO)}, 65536")
    g(f"s_cbranch_scc1 L_slow1_{tag}")
    for rt in range(NT):
        m = VM + rt
        for op in ("v_permlane32_swap_b32", "v_permlane16_swap_b32"):
            g(f"v_mov_b32 {v(V_TMP)}, {v(m)}")
            g(f"{op} {v(V_TMP)}, {v(m)}")
            g.nop(2)
            g(f"v_max_f32 {v(m)}, {v(m)}, {v(V_TMP)}")
        g(f"ds_write_b32 {v(V_LW)}, {v(m)} offset:{2048 + rt * 256}")
    g.wait_all(force=True)
    g("s_barrier")
    for rt in range(NT):
        p = V_B + 4 * rt
        g(f"ds_read_b128 {v(p, 4)}, {v(V_LR)} offset:{2048 + rt * 256}")
        g(f"v_max3_f32 {v(p)}, {v(p)}, {v(p + 1)}, {v(p + 2)}")
        g(f"v_max_f32 {v(VM + rt)}, {v(p)}, {v(p + 3)}")
    for rt in range(NT):
        for i in range(4):
            g(f"v_mov_b32 {v(lacc(rt) + i)}, 0")
    g(f"s_mov_b32 {s(S_CNT)}, 0")
    g.label(f"L_slow2_{tag}")
    for pi in range(4):
        half, idx = pgroup(pi)
        g(f"s_cmp_eq_u32 {s(S_CNT)}, {pi}")
        g(f"s_cselect_b32 {s(S_SO)}, {ktiles[2 * pi] * 8192}, {s(S_SO)}")
        g(f"s_cselect_b32 {s(S_T)}, {half * HALF + idx * 4 * NT * 1024}, {s(S_T)}")
    g(f"s_xor_b32 {s(S_SO)}, {s(S_SO)}, {s(S_KX)}")
    g(f"v_add_u32 {v(VP)}, {s(S_T)}, {v(V_PW)}")
    for par in range(2):
        slow_tile(par)
        if par == 0:
            g(f"s_xor_b32 {s(S_SO)}, {s(S_SO)}, 8192")
        for rt in range(NT):
            c = sacc(par, rt)
            for i in range(4):
                g(f"v_sub_f32 {v(c + i)}, {v(c + i)}, {v(VM + rt)}")
            for i in range(4):
                g(f"v_exp_f32 {v(c + i)}, {v(c + i)}")
            for h2 in range(2):
                g(f"v_cvt_pk_bf16_f32 {v(pk(rt) + 2 * par + h2)}, {v(c + 2 * h2)}, {v(c + 2 * h2 + 1)}")
    for rt in range(NT):
        g(f"ds_write_b128 {v(VP)}, {v(pk(rt), 4)} offset:{rt * 1024}")
        g(mfma(v(lacc(rt), 4), v(V_ONE, 4), v(pk(rt), 4), False))
    g(f"s_add_u32 {s(S_CNT)}, {s(S_CNT)}, 1")
    g(f"s_cmp_lt_u32 {s(S_CNT)}, 4")
    g.nop(8)
    g(f"s_cbranch_scc1 L_slow2_{tag}")
    write_l()
    g.wait_all(force=True)
    g.nop(8)
    g("s_barrier")
    g(f"s_branch L_pv_{tag}")


HEAD = """; Fused MHA block: out = softmax((x wq) K^T / 16) V wo   (B=8, Sq=144, D=448, H=16, Sk=512, Dh=256, bf16)
; kernarg: x@0 k_cache@8 v_cache@16 wq@24 wo@32 out@40 debug@48 ws@56
; One workgroup per (batch, head, row half): q-projection, attention and that head's share of the output
; projection; the per-head partial outputs are handed over through ws and summed by the same workgroups.
"""


KN = "standalone__mha_block_cached__near_ridge_kernel"


def build(o):
    g = Gen()
    g.raw(HEAD.rstrip())
    g.raw(f"; @launch grid=(256,1,1) block=(256,1,1) lds={LDS_BYTES}")
    g.raw(f'.amdgcn_target "amdgcn-amd-amdhsa--gfx950"\n.text\n.globl {KN}\n.p2align 8\n.type {KN},@function')
    g.label(KN)
    prologue(g, o)
    g(f"s_cmp_eq_u32 {s(S_R)}, 1")
    g("s_cbranch_scc1 L_light")
    snap = g.snapshot()
    bh = body(g, o, 5, "h"); next(bh)
    g.raw(".p2align 6")
    g.label("L_light")
    g.restore(snap)
    bl = body(g, o, 4, "l"); next(bl)
    g.label("L_main_end")
    for b in (bh, bl):
        for _ in b: pass
    g.label("L_k1_end")
    g("s_endpgm")
    g.raw(kd(KN, 512, 256))
    return g


if __name__ == "__main__":
    o = Opt()
    out = sys.argv[1]
    for kv in sys.argv[2:]:
        k, _, val = kv.partition("=")
        cur = getattr(o, k)
        if isinstance(cur, bool): val = val in ("1", "true", "True")
        elif isinstance(cur, int): val = int(val)
        else: val = val.replace("+", " ")
        setattr(o, k, val)
    g = build(o)
    open(out, "w").write(g.text())
    print(out, "instrs", g.ninstr, "nops", g.nnops, file=sys.stderr)
```
